```python
import torch

def _softmax(x, axis=-1):
    return torch.softmax(x, dim=axis)
def _gelu(x):
    return torch.nn.functional.gelu(x, approximate="tanh")
def _silu(x):
    return torch.nn.functional.silu(x)
def _sigmoid(x):
    return torch.sigmoid(x)
def _layernorm(x, axis=-1, eps=1e-5):
    m = x.mean(dim=axis, keepdim=True)
    v = x.var(dim=axis, keepdim=True, unbiased=False)
    return (x - m) / torch.sqrt(v + eps)
def _scatter_add(tgt, idx, src, axis=0):
    return tgt.clone().index_add_(axis, idx, src)
def _segment_sum(src, seg, n):
    out = torch.zeros((n,) + src.shape[1:], dtype=src.dtype)
    return out.index_add_(0, seg, src)
def _pad(x, pw):
    flat = tuple(v for pair in reversed(pw) for v in pair)
    return torch.nn.functional.pad(x, flat)

kernel_name = 'parallel_sum__sliding_block__mixer_token_mlp__prompt'

def setup_inputs():

    _w = (lambda a: (lambda t: t.to(torch.bfloat16) if t.is_floating_point() else t)(torch.as_tensor(a)))
    def _A_setup():
        B, S, D = 1, 2048, 1024
        return {
            "x": _w((lambda *s: torch.randn(*s, dtype=torch.bfloat16) * 0.05)(B, S, D)),
            "wqkv": _w((lambda *s: torch.randn(*s, dtype=torch.bfloat16) * 0.05)(D, 3 * D)),
            "wo": _w((lambda *s: torch.randn(*s, dtype=torch.bfloat16) * 0.05)(D, D)),
        }
    _A_in = _A_setup()

    def _B_setup():
        B, S, D, F = 1, 2048, 1024, 3584
        return {
            "x": _w((lambda *s: torch.randn(*s, dtype=torch.bfloat16) * 0.05)(B, S, D)),
            "w1": _w((lambda *s: torch.randn(*s, dtype=torch.bfloat16) * 3.2)(S, F) * (S ** -0.5)),
            "b1": _w((lambda *s: torch.randn(*s, dtype=torch.bfloat16) * 3.2)(F) * 0.02),
            "w2": _w((lambda *s: torch.randn(*s, dtype=torch.bfloat16) * 0.4)(F, S) * (F ** -0.5)),
            "b2": _w((lambda *s: torch.randn(*s, dtype=torch.bfloat16) * 0.4)(S) * 0.02),
        }
    _B_in = _B_setup()

    return {
        "A_x": _A_in["x"],
        "A_wqkv": _A_in["wqkv"],
        "A_wo": _A_in["wo"],
        "B_x": _B_in["x"],
        "B_w1": _B_in["w1"],
        "B_b1": _B_in["b1"],
        "B_w2": _B_in["w2"],
        "B_b2": _B_in["b2"],
    }

def reference(A_x, A_wqkv, A_wo, B_x, B_w1, B_b1, B_w2, B_b2):
    def _A_ref(x, wqkv, wo):
        B, S, D = x.shape
        H = 32; Dh = D // H; W = 256
        qkv = (lambda x, *d: x.permute(*d))((x @ wqkv).reshape(B, S, 3, H, Dh), 2, 0, 3, 1, 4)
        q, k, v = qkv[0], qkv[1], qkv[2]
        scores = torch.einsum("bhqd,bhkd->bhqk", q, k) * (Dh ** -0.5)
        idx = torch.arange(S)
        mask = (idx[:, None] - idx[None, :] >= 0) & (idx[:, None] - idx[None, :] < W)
        scores = torch.where(mask[None, None], scores, -1e9)
        p = _softmax(scores, axis=-1)
        o = torch.einsum("bhqk,bhkd->bhqd", p, v)
        return (lambda x, *d: x.permute(*d))(o, 0, 2, 1, 3).reshape(B, S, D) @ wo

    def _B_ref(x, w1, b1, w2, b2):
        B, S, D = x.shape
        h = _layernorm(x, axis=-1)
        u = torch.einsum("bsd,sf->bdf", h, w1) + b1
        u = _gelu(u)
        y = torch.einsum("bdf,fs->bds", u, w2) + b2
        return (lambda x, *d: x.permute(*d))(y, 0, 2, 1)

    x = A_x
    xn = _layernorm(x, axis=-1)
    return x + _A_ref(xn, A_wqkv, A_wo) + _B_ref(xn, B_w1, B_b1, B_w2, B_b2)
```

```python
import re

TRANS = ("v_exp_f32", "v_log_f32", "v_rcp_f32", "v_rsq_f32", "v_sqrt_f32", "v_sin_f32", "v_cos_f32", "v_rcp_iflag_f32")

_reg_re = re.compile(r"^(-|abs\()?([vsa])(?:\[(\d+):(\d+)\]|(\d+))\)?$")

def parse_reg(tok):
    tok = tok.strip()
    if tok in ("vcc",):
        return [("s", 106), ("s", 107)]
    if tok == "vcc_lo": return [("s", 106)]
    if tok == "vcc_hi": return [("s", 107)]
    if tok == "m0": return [("s", 124)]
    if tok == "exec": return [("s", 126), ("s", 127)]
    m = _reg_re.match(tok)
    if not m:
        return []
    k = m.group(2)
    if m.group(3) is not None:
        return [(k, i) for i in range(int(m.group(3)), int(m.group(4)) + 1)]
    return [(k, int(m.group(5)))]

def split_ops(s):
    out, depth, cur = [], 0, ""
    for ch in s:
        if ch in "[(": depth += 1
        if ch in "])": depth -= 1
        if ch == "," and depth == 0:
            out.append(cur); cur = ""
        else:
            cur += ch
    if cur.strip(): out.append(cur)
    return [o.strip() for o in out]

class Ins:
    __slots__ = ("text", "op", "cls", "dst", "src", "srcC", "srcAB", "passes", "states", "label", "target",
                 "dpp", "ldsdma", "widestore", "uncond", "lanesel")
    def __init__(self, text):
        self.text = text
        t = text.split(";")[0].strip()
        self.label = None; self.target = None; self.uncond = False
        self.dst = []; self.src = []; self.srcC = []; self.srcAB = []; self.passes = 0
        self.states = 1; self.dpp = False; self.ldsdma = False; self.widestore = []; self.lanesel = []
        if t.endswith(":"):
            self.label = t[:-1]; self.op = "label"; self.cls = "label"; self.states = 0
            return
        if t.startswith(".") or not t:
            self.op = "dir"; self.cls = "dir"; self.states = 0
            return
        parts = t.split(None, 1)
        op = parts[0]; rest = parts[1] if len(parts) > 1 else ""
        self.op = op
        ops = split_ops(rest)
        mods = []
        if ops:
            last = ops[-1].split()
            if len(last) > 1 and not ops[-1].startswith("hwreg"):
                ops[-1] = last[0]; mods = last[1:]
        R = [parse_reg(o) for o in ops]
        if op.startswith("v_mfma"):
            self.cls = "mfma"
            self.dst = R[0]; self.srcAB = R[1] + R[2]; self.srcC = R[3]; self.src = self.srcAB + self.srcC
            self.passes = 8 if "32x32x16" in op else 4
        elif op.startswith("v_"):
            self.cls = "trans" if op.replace("_e32", "").replace("_e64", "") in TRANS else "valu"
            self.dpp = ("_dpp" in op) or any(m.startswith(("quad_perm", "row_", "wave_")) for m in mods)
            if op.startswith("v_permlane") and "swap" in op:
                self.dst = R[0] + R[1]; self.src = R[0] + R[1]
            elif op.startswith("v_cmp"):
                self.dst = R[0]; self.src = sum(R[1:], [])
            elif op.startswith(("v_add_co", "v_sub_co", "v_addc_co", "v_subb_co", "v_mad_u64_u32")):
                self.dst = R[0] + R[1]; self.src = sum(R[2:], [])
            else:
                self.dst = R[0]; self.src = sum(R[1:], [])
                if op.startswith(("v_fmac", "v_dot2c", "v_writelane")) or self.dpp or "sdwa" in op:
                    self.src = self.src + R[0]
                if op.startswith(("v_readlane", "v_writelane")):
                    self.lanesel = R[2]
                if op.startswith("v_cndmask") and len(ops) == 3:
                    self.src = self.src + parse_reg("vcc")
        elif op.startswith(("buffer_", "global_")):
            self.cls = "vmem"
            self.ldsdma = ("lds" in mods) or ("_lds_" in op)
            if "load" in op and not self.ldsdma:
                self.dst = R[0]; self.src = sum(R[1:], [])
            elif "atomic" in op and "sc0" in mods:
                self.dst = R[0]; self.src = sum(R, [])
            else:
                self.src = sum(R, [])
                if "store" in op and ("x4" in op or "x3" in op):
                    self.widestore = R[0] if op.startswith("buffer_") else R[1]
            if self.ldsdma: self.src = self.src + parse_reg("m0")
        elif op.startswith("ds_"):
            self.cls = "ds"
            if "read" in op or "permute" in op or "swizzle" in op:
                self.dst = R[0]; self.src = sum(R[1:], [])
            else:
                self.src = sum(R, [])
        elif op.startswith("s_"):
            self.cls = "salu"
            if op == "s_nop":
                self.states = int(ops[0], 0) + 1
            elif op.startswith(("s_cbranch", "s_branch")):
                self.target = ops[0]; self.uncond = op == "s_branch"
            elif op == "s_endpgm":
                self.uncond = True
            elif op.startswith(("s_cmp", "s_waitcnt", "s_barrier", "s_setprio", "s_sleep")):
                self.src = sum(R, [])
            else:
                self.dst = R[0] if R else []; self.src = sum(R[1:], [])
        else:
            raise ValueError("unknown instr: " + text)

def need(p, c):
    n = 0
    pd = set(p.dst)
    if p.cls in ("valu", "trans"):
        vd = {r for r in pd if r[0] in "va"}
        sd = {r for r in pd if r[0] == "s"}
        if vd:
            if c.cls == "mfma" and vd & set(c.src): n = max(n, 2)
            if c.cls in ("valu", "trans"):
                if vd & set(c.src):
                    if c.op.startswith(("v_readlane", "v_readfirstlane")): n = max(n, 1)
                    if c.op.startswith("v_permlane"): n = max(n, 2)
                    if c.dpp: n = max(n, 2)
                    if p.cls == "trans" and c.cls != "trans": n = max(n, 1)
                    if "sdwa" in p.op or "op_sel" in p.text: n = max(n, 1)
        if sd:
            if c.cls in ("valu", "trans", "mfma") and sd & set(c.src): n = max(n, 2)
            if c.lanesel and sd & set(c.lanesel): n = max(n, 4)
            if c.cls == "vmem" and sd & set(c.src): n = max(n, 5)
            if c.cls == "salu" and sd & set(c.src): n = max(n, 1)
    if p.cls == "mfma":
        big = 12 if p.passes == 8 else 8
        if c.cls in ("valu", "trans", "vmem", "ds") and pd & (set(c.src) | set(c.dst)): n = max(n, big)
        if c.cls == "mfma":
            if pd & set(c.srcAB): n = max(n, big)
            if pd & set(c.srcC) and not (c.srcC == p.dst and c.passes == p.passes): n = max(n, big - 2)
            if pd & set(c.dst) and not (c.srcC == p.dst): n = max(n, big)
        if c.cls in ("valu", "trans") and set(p.srcC) & set(c.dst): n = max(n, 7 if p.passes == 8 else 3)
    if p.cls == "salu" and ("s", 124) in pd and c.ldsdma: n = max(n, 1)
    if p.widestore and set(p.widestore) & set(c.dst):
        n = max(n, 2 if c.cls in ("valu", "trans", "mfma") else 1)
    return n

class Asm:
    def __init__(self):
        self.ins = []
        self.auto = True
    def __call__(self, text):
        for line in text.split("\n"):
            line = line.strip()
            if not line: continue
            if line.startswith(";"):
                self.ins.append(Ins(".;" + line)); self.ins[-1].text = line; continue
            i = Ins(line)
            if self.auto and i.cls not in ("label", "dir"):
                dist = 0; req = 0
                for p in reversed(self.ins):
                    if dist >= 20: break
                    if p.uncond: break
                    if p.cls in ("label", "dir"): continue
                    r = need(p, i) - dist
                    req = max(req, r)
                    dist += p.states
                while req > 0:
                    k = min(req, 16)
                    self.ins.append(Ins(f"s_nop {k-1}"))
                    req -= k
            self.ins.append(i)
    def verify(self):
        ins = self.ins
        labels = {x.label: n for n, x in enumerate(ins) if x.label}
        jumps = {}
        for n, x in enumerate(ins):
            if x.target is not None:
                jumps.setdefault(labels[x.target], []).append(n)
        bad = []
        def preds(n):
            out = []
            if n > 0 and not ins[n - 1].uncond: out.append(n - 1)
            if ins[n].label: out += jumps.get(n, [])
            return out
        for n, c in enumerate(ins):
            if c.cls in ("label", "dir"): continue
            stack = [(p, 0) for p in preds(n)]
            seen = set()
            while stack:
                m, dist = stack.pop()
                if (m, dist) in seen or dist >= 20: continue
                seen.add((m, dist))
                p = ins[m]
                if p.cls not in ("label", "dir"):
                    if need(p, c) > dist:
                        bad.append((m, p.text, n, c.text, need(p, c), dist))
                for q in preds(m):
                    stack.append((q, dist + p.states))
        return bad
    def text(self):
        return "\n".join(("" if (x.label or x.cls == "dir") else "    ") + x.text for x in self.ins) + "\n"
    def maxreg(self, start=0, end=None):
        mv = ms = ma = -1
        for x in self.ins[start:end]:
            for k, i in x.dst + x.src:
                if k == "v": mv = max(mv, i)
                elif k == "a": ma = max(ma, i)
                elif k == "s" and i < 102: ms = max(ms, i)
        return mv, ms, ma
```

```python
from asmlib import Asm

def log2(x):
    l = x.bit_length() - 1
    assert 1 << l == x, x
    return l

class G:
    def __init__(s, TP, TW, BK, NS, WP, WW, order, perm, ldw, lds_base=0, dma_first=None, rd_rate=2):
        s.TP, s.TW, s.BK, s.NS, s.WP, s.WW, s.order, s.perm, s.ldw = TP, TW, BK, NS, WP, WW, order, perm, ldw
        s.KS = BK // 16
        s.nw = WP * WW
        s.WTP = TP // WP; s.WTW = TW // WW
        s.nP = s.WTP // 32; s.nW = s.WTW // 32
        s.Psz = TP * BK * 2; s.Wsz = TW * BK * 2; s.SLOT = s.Psz + s.Wsz
        s.npd = (TP // 32) * s.KS // s.nw
        s.nwd = s.Wsz // 1024 // s.nw
        assert s.npd * s.nw == (TP // 32) * s.KS and s.nwd * s.nw * 1024 == s.Wsz
        assert s.npd <= s.KS and s.KS % s.npd == 0 and s.npd <= 4 and s.nwd <= 4
        s.RP = 512 // TW; s.LPR = TW // 8
        s.nd = s.npd + s.nwd
        s.lds = s.SLOT * NS
        s.lds_base = lds_base
        s.dma_first = s.nd if dma_first is None else dma_first
        s.rd_rate = rd_rate
        s.nfrag = (s.nP + s.nW) * 4

def gemm_setup(a, g, R):
    lane = R["lane"]; t0, t1, t2, t3 = R["vt"][:4]; st0, st1 = R["st"][:2]
    a(f"v_lshlrev_b32 v{R['vDP']}, 4, v{lane}")
    a(f"v_lshrrev_b32 v{t0}, {log2(g.LPR)}, v{lane}")
    a(f"v_and_b32 v{t1}, {g.LPR-1}, v{lane}")
    a(f"s_mul_i32 s{st0}, s{R['s_w']}, {g.nwd*g.RP}")
    a(f"s_mov_b32 s{st1}, {g.ldw}")
    for j in range(g.nwd):
        d = R["vDW"][j]
        a(f"v_add_u32 v{t2}, {j*g.RP}, v{t0}")
        a(f"v_add_u32 v{t3}, s{st0}, v{t2}")
        if g.TW >= 128:
            a(f"v_and_b32 v{t3}, 3, v{t3}")
        else:
            a(f"v_bfe_u32 v{t3}, v{t3}, 1, 1")
        a(f"v_lshlrev_b32 v{t3}, 2, v{t3}")
        a(f"v_xor_b32 v{t3}, v{t3}, v{t1}")
        a(f"v_lshlrev_b32 v{t3}, 4, v{t3}")
        a(f"v_mul_lo_u32 v{t2}, v{t2}, s{st1}")
        a(f"v_add_u32 v{d}, v{t2}, v{t3}")
        if j:
            a(f"v_subrev_u32 v{d}, {j*1024}, v{d}")
    a(f"s_mul_i32 s{R['s_m0P']}, s{R['s_w']}, {g.npd*1024}")
    if g.lds_base:
        a(f"s_add_u32 s{R['s_m0P']}, s{R['s_m0P']}, {g.lds_base}")
    a(f"s_mul_i32 s{R['s_m0W']}, s{R['s_w']}, {g.nwd*1024}")
    a(f"s_add_u32 s{R['s_m0W']}, s{R['s_m0W']}, {g.Psz + g.lds_base}")
    a(f"s_mul_i32 s{st0}, s{R['s_wp']}, {g.nP*g.KS*1024}")
    if g.lds_base:
        a(f"s_add_u32 s{st0}, s{st0}, {g.lds_base}")
    a(f"v_add_u32 v{R['vAPb']}, s{st0}, v{R['vDP']}")
    a(f"v_bfe_u32 v{t0}, v{lane}, 2, 2")
    a(f"v_lshrrev_b32 v{t1}, 5, v{lane}")
    a(f"v_lshlrev_b32 v{t1}, {2 if g.perm else 3}, v{t1}")
    a(f"v_add_u32 v{t1}, v{t1}, v{t0}")
    a(f"v_lshlrev_b32 v{t1}, {log2(g.TW*2)}, v{t1}")
    a(f"v_and_b32 v{t2}, 3, v{lane}")
    a(f"v_lshlrev_b32 v{t2}, 3, v{t2}")
    a(f"v_add_u32 v{t1}, v{t1}, v{t2}")
    a(f"v_bfe_u32 v{t2}, v{lane}, 4, 1")
    a(f"v_lshlrev_b32 v{t2}, 5, v{t2}")
    a(f"v_add_u32 v{t1}, v{t1}, v{t2}")
    a(f"v_add_u32 v{t1}, {g.Psz + g.lds_base}, v{t1}")
    if g.TW < 128:
        a(f"v_lshrrev_b32 v{t0}, 1, v{t0}")
    a(f"s_mul_i32 s{st0}, s{R['s_ww']}, {g.nW}")
    for i in range(g.nW):
        a(f"s_add_u32 s{st1}, s{st0}, {i}")
        a(f"v_xor_b32 v{t2}, s{st1}, v{t0}")
        a(f"v_lshlrev_b32 v{t2}, 6, v{t2}")
        a(f"v_add_u32 v{R['vAWb'][i]}, v{t1}, v{t2}")

def dma_items(g, R, slot):
    items = []
    sP, sW = R["sP"], R["sW"]
    def m0(base):
        if slot is None:
            return f"s_add_u32 m0, s{base}, s{R['s_wslot']}"
        return f"s_add_u32 m0, s{base}, {slot}"
    for j in range(g.npd):
        it = []
        if j == 0: it.append(m0(R["s_m0P"]))
        it.append(f"buffer_load_dwordx4 v{R['vDP']}, s[{sP}:{sP+3}], s{R['s_soffP']} offen offset:{j*1024} lds")
        if j == g.npd - 1: it.append(f"s_add_u32 s{R['s_soffP']}, s{R['s_soffP']}, {g.KS*1024}")
        items.append(it)
    for j in range(g.nwd):
        it = []
        if j == 0: it.append(m0(R["s_m0W"]))
        it.append(f"buffer_load_dwordx4 v{R['vDW'][j]}, s[{sW}:{sW+3}], s{R['s_soffW']} offen offset:{j*1024} lds")
        if j == g.nwd - 1: it.append(f"s_add_u32 s{R['s_soffW']}, s{R['s_soffW']}, {g.BK*g.ldw}")
        items.append(it)
    return items

def frag_regs(g, R, st):
    b = R["frag"] + st * g.nfrag
    P = [b + 4 * i for i in range(g.nP)]
    W = [b + 4 * g.nP + 4 * i for i in range(g.nW)]
    return P, W

def read_items(g, R, ks, st):
    P, W = frag_regs(g, R, st)
    qs = 8 if g.perm else 4
    def rp(i):
        return (("P", st, i), f"ds_read_b128 v[{P[i]}:{P[i]+3}], v{R['vAP']} offset:{i*g.KS*1024 + ks*1024}")
    def rw(i, q):
        return (("W", st, i), f"ds_read_b64_tr_b16 v[{W[i]+2*q}:{W[i]+2*q+1}], v{R['vAW'][i]} offset:{(16*ks+q*qs)*g.TW*2}")
    out = [rp(0)]
    for i in range(g.nW):
        out += [rw(i, 0), rw(i, 1)]
    for i in range(1, g.nP):
        out.append(rp(i))
    return out

class LQ:
    def __init__(s): s.q = []
    def push(s, tag): s.q.append(tag)
    def wait(s, a, tags):
        idx = -1
        for n, t in enumerate(s.q):
            if t in tags: idx = n
        if idx >= 0:
            cnt = len(s.q) - idx - 1
            a(f"s_waitcnt lgkmcnt({min(cnt,15)})")
            s.q = s.q[idx + 1:]
    def clear(s): s.q = []

def gemm_prologue_dma(a, g, R):
    for st in range(g.NS - 1):
        for it in dma_items(g, R, st * g.SLOT):
            for x in it: a(x)
    a(f"s_mov_b32 s{R['s_wslot']}, {(g.NS-1)*g.SLOT}")
    for it in dma_items(g, R, None)[:g.dma_first]:
        for x in it: a(x)

def gemm_loop(a, g, R, NK, tag, acc, extra_vm=0):
    n = g.nd
    a(f"s_waitcnt vmcnt({min(63,(g.NS-2)*n + g.dma_first + extra_vm)})")
    a("s_barrier")
    a(f"s_mov_b32 s{R['s_rslot']}, 0")
    a(f"v_mov_b32 v{R['vAP']}, v{R['vAPb']}")
    for i in range(g.nW):
        a(f"v_mov_b32 v{R['vAW'][i]}, v{R['vAWb'][i]}")
    a(f"s_mov_b32 s{R['s_cnt']}, {NK}")
    lq = LQ()
    for t, x in read_items(g, R, 0, 0):
        a(x); lq.push(t)
    entry_q = list(lq.q)
    a(f"L_{tag}:")
    ditems = dma_items(g, R, None)
    first, rest = ditems[:g.dma_first], ditems[g.dma_first:]
    per = [[] for _ in range(g.KS)]
    per[g.KS - 1] = first
    for k, it in enumerate(rest):
        per[(k * (g.KS - 1)) // len(rest)].append(it)
    for ks in range(g.KS):
        st = ks & 1
        P, W = frag_regs(g, R, st)
        if ks == g.KS - 1:
            a(f"s_waitcnt vmcnt({min(63,(g.NS-2)*n)}) lgkmcnt(0)")
            lq.clear()
            a("s_barrier")
            pre = [f"s_mov_b32 s{R['s_wslot']}, s{R['s_rslot']}",
                   f"s_add_u32 s{R['s_rslot']}, s{R['s_rslot']}, {g.SLOT}",
                   f"s_cmp_eq_u32 s{R['s_rslot']}, {g.SLOT*g.NS}",
                   f"s_cselect_b32 s{R['s_rslot']}, 0, s{R['s_rslot']}",
                   f"v_add_u32 v{R['vAP']}, s{R['s_rslot']}, v{R['vAPb']}"]
            for i in range(g.nW):
                pre.append(f"v_add_u32 v{R['vAW'][i]}, s{R['s_rslot']}, v{R['vAWb'][i]}")
            reads = read_items(g, R, 0, st ^ 1)
        else:
            pre = []
            reads = read_items(g, R, ks + 1, st ^ 1)
        side = [("r", t, x) for t, x in reads] + [("d", None, it) for it in per[ks]]
        mf = [(i, j) for i in range(g.nP) for j in range(g.nW)]
        for m, (i, j) in enumerate(mf):
            lq.wait(a, {("P", st, i), ("W", st, j)})
            c = acc(i, j)
            A, B = (P[i], W[j]) if g.order == "PW" else (W[j], P[i])
            a(f"v_mfma_f32_32x32x16_bf16 v[{c}:{c+15}], v[{A}:{A+3}], v[{B}:{B+3}], v[{c}:{c+15}]")
            if m == 0:
                for x in pre: a(x)
            budget = g.rd_rate
            last = m == len(mf) - 1
            while side and (budget > 0 or last):
                kind, t, x = side.pop(0)
                if kind == "r":
                    a(x); lq.push(t); budget -= 1
                else:
                    for y in x: a(y)
                    budget -= g.rd_rate
        if ks == g.KS - 1:
            a(f"s_sub_u32 s{R['s_cnt']}, s{R['s_cnt']}, 1")
            a(f"s_cmp_lg_u32 s{R['s_cnt']}, 0")
            a(f"s_cbranch_scc1 L_{tag}")
    assert lq.q == entry_q, (lq.q, entry_q)
    a("s_waitcnt vmcnt(0) lgkmcnt(0)")
```

```python
import sys, struct
from asmlib import Asm
from gemm import *

NAME = "parallel_sum__sliding_block__mixer_token_mlp__prompt"
WS_XN = 0
WS_HT = 4 << 20
WS_QKV = 8 << 20
WS_U = 20 << 20
WS_O = 28 << 20
WS_PART = 32 << 20
WS_BYTES = 256 << 20
KA = dict(x=0, wqkv=8, wo=16, bx=24, w1=32, b1=40, w2=48, b2=56, out=64, dbg=72, ws=80)

def f32(x):
    return "0x%08x" % struct.unpack("<I", struct.pack("<f", x))[0]

def kernel_begin(a, name):
    a(f".globl {name}\n.p2align 8\n.type {name},@function\n{name}:")

def srd(a, d, lo, hi, nbytes, off=0):
    if off:
        a(f"s_add_u32 s{d}, s{lo}, {off}")
        a(f"s_addc_u32 s{d+1}, s{hi}, 0")
        a(f"s_and_b32 s{d+1}, s{d+1}, 0xffff")
    else:
        a(f"s_mov_b32 s{d}, s{lo}")
        a(f"s_and_b32 s{d+1}, s{hi}, 0xffff")
    a(f"s_mov_b32 s{d+2}, {nbytes}")
    a(f"s_mov_b32 s{d+3}, 0x20000")

def srd_s(a, d, lo, hi, nbytes, soff):
    a(f"s_add_u32 s{d}, s{lo}, s{soff}")
    a(f"s_addc_u32 s{d+1}, s{hi}, 0")
    a(f"s_and_b32 s{d+1}, s{d+1}, 0xffff")
    a(f"s_mov_b32 s{d+2}, {nbytes}")
    a(f"s_mov_b32 s{d+3}, 0x20000")

def wave_sum(a, v, t, sdst):
    for ctl in ("quad_perm:[1,0,3,2]", "quad_perm:[2,3,0,1]", "row_half_mirror", "row_mirror"):
        a(f"v_add_f32_dpp v{v}, v{v}, v{v} {ctl} row_mask:0xf bank_mask:0xf")
    a(f"v_add_f32_dpp v{v}, v{v}, v{v} row_bcast:15 row_mask:0xa bank_mask:0xf")
    a(f"v_add_f32_dpp v{v}, v{v}, v{v} row_bcast:31 row_mask:0xc bank_mask:0xf")
    a(f"v_readlane_b32 s{sdst}, v{v}, 63")

def k_ln(a, name):
    kernel_begin(a, name)
    RS = 2112
    HOFF = 8 * RS
    a("s_cmp_ge_u32 s2, 256")
    a(f"s_cbranch_scc1 L_{name}_end")
    a(f"s_load_dwordx2 s[4:5], s[0:1], {KA['x']}")
    a(f"s_load_dwordx2 s[6:7], s[0:1], {KA['ws']}")
    a("v_and_b32 v1, 63, v0")
    a("v_lshrrev_b32 v2, 6, v0")
    a("v_readfirstlane_b32 s16, v2")
    a("v_lshlrev_b32 v3, 4, v1")
    a("s_lshl_b32 s17, s2, 3")
    a("s_add_u32 s17, s17, s16")
    a("s_lshl_b32 s18, s17, 11")
    a("s_waitcnt lgkmcnt(0)")
    srd(a, 8, 4, 5, 2048 * 1024 * 2)
    srd(a, 12, 6, 7, 8 << 20)
    a("buffer_load_dwordx4 v[4:7], v3, s[8:11], s18 offen")
    a("buffer_load_dwordx4 v[8:11], v3, s[8:11], s18 offen offset:1024")
    a("s_mov_b32 s20, 0xffff0000")
    a(f"s_mov_b32 s21, {f32(1.0/1024)}")
    a(f"s_mov_b32 s22, {f32(1e-5)}")
    a(f"s_mul_i32 s19, s16, {RS}")
    a("v_add_u32 v12, s19, v3")
    X = 16
    T = 32
    PK = 4
    a("s_waitcnt vmcnt(0)")
    for rnd in range(2):
        for i in range(8):
            a(f"v_lshlrev_b32 v{X+2*i}, 16, v{PK+i}")
            a(f"v_and_b32 v{X+2*i+1}, s20, v{PK+i}")
        for i in range(4):
            a(f"v_pk_add_f32 v[{T+2*i}:{T+2*i+1}], v[{X+4*i}:{X+4*i+1}], v[{X+4*i+2}:{X+4*i+3}]")
        a(f"v_pk_add_f32 v[{T}:{T+1}], v[{T}:{T+1}], v[{T+2}:{T+3}]")
        a(f"v_pk_add_f32 v[{T+4}:{T+5}], v[{T+4}:{T+5}], v[{T+6}:{T+7}]")
        a(f"v_pk_add_f32 v[{T}:{T+1}], v[{T}:{T+1}], v[{T+4}:{T+5}]")
        a(f"v_add_f32 v{T}, v{T}, v{T+1}")
        wave_sum(a, T, T + 1, 24)
        a(f"v_mov_b32 v13, s24")
        a(f"v_mul_f32 v13, s21, v13")
        for i in range(16):
            a(f"v_sub_f32 v{T+i}, v{X+i}, v13")
        a(f"v_mul_f32 v14, v{T}, v{T}")
        a(f"v_mul_f32 v15, v{T+1}, v{T+1}")
        for i in range(2, 16, 2):
            a(f"v_fmac_f32 v14, v{T+i}, v{T+i}")
            a(f"v_fmac_f32 v15, v{T+i+1}, v{T+i+1}")
        a("v_add_f32 v14, v14, v15")
        wave_sum(a, 14, 15, 25)
        a("v_mov_b32 v14, s25")
        a("v_mul_f32 v14, s21, v14")
        a("v_cvt_pk_bf16_f32 v15, v13, v14")
        a("v_lshlrev_b32 v13, 16, v15")
        a("v_and_b32 v14, s20, v15")
        a("v_add_f32 v14, s22, v14")
        a("v_cvt_pk_bf16_f32 v14, v14, v14")
        a("v_and_b32 v14, s20, v14")
        a("v_sqrt_f32 v14, v14")
        a("v_cvt_pk_bf16_f32 v14, v14, v14")
        a("v_and_b32 v14, s20, v14")
        a("v_rcp_f32 v15, v14")
        a("v_fma_f32 v2, -v14, v15, 1.0")
        a("v_fma_f32 v15, v2, v15, v15")
        for i in range(16):
            a(f"v_sub_f32 v{T+i}, v{X+i}, v13")
        for i in range(8):
            a(f"v_cvt_pk_bf16_f32 v{PK+i}, v{T+2*i}, v{T+2*i+1}")
        for i in range(8):
            a(f"v_lshlrev_b32 v{T+2*i}, 16, v{PK+i}")
            a(f"v_and_b32 v{T+2*i+1}, s20, v{PK+i}")
        for i in range(16):
            a(f"v_mul_f32 v{T+i}, v{T+i}, v15")
        for i in range(8):
            a(f"v_cvt_pk_bf16_f32 v{PK+i}, v{T+2*i}, v{T+2*i+1}")
        off = 0 if rnd == 0 else HOFF
        a(f"ds_write_b128 v12, v[{PK}:{PK+3}] offset:{off}")
        a(f"ds_write_b128 v12, v[{PK+4}:{PK+7}] offset:{off+1024}")
        if rnd == 0:
            a("s_waitcnt lgkmcnt(0)")
    a("v_and_b32 v16, 7, v0")
    a("v_lshrrev_b32 v17, 3, v0")
    a(f"v_mul_u32_u24 v18, {RS}, v16")
    a("v_lshl_add_u32 v18, v17, 4, v18")
    a("v_lshrrev_b32 v19, 1, v17")
    a("v_lshlrev_b32 v19, 10, v19")
    a("v_and_b32 v20, 1, v17")
    a("v_lshl_add_u32 v19, v20, 9, v19")
    a("v_lshl_add_u32 v19, v16, 4, v19")
    a("s_lshr_b32 s26, s2, 2")
    a("s_lshl_b32 s26, s26, 16")
    a("s_and_b32 s27, s2, 3")
    a("s_lshl_b32 s27, s27, 7")
    a("s_add_u32 s26, s26, s27")
    a("s_add_u32 s27, s26, 32768")
    a("v_bfe_u32 v20, v1, 2, 2")
    a(f"v_mul_u32_u24 v20, {RS}, v20")
    a("v_lshrrev_b32 v21, 4, v1")
    a("v_lshl_add_u32 v20, v21, 5, v20")
    a("v_and_b32 v21, 3, v1")
    a("v_lshl_add_u32 v20, v21, 3, v20")
    a("s_lshl_b32 s28, s16, 8")
    a(f"s_add_u32 s28, s28, {HOFF}")
    a("v_add_u32 v20, s28, v20")
    a("v_lshrrev_b32 v21, 5, v1")
    a("v_lshlrev_b32 v21, 17, v21")
    a("v_and_b32 v22, 31, v1")
    a("v_lshl_add_u32 v21, v22, 4, v21")
    a("s_lshl_b32 s29, s16, 19")
    a("s_lshl_b32 s30, s2, 9")
    a("s_add_u32 s29, s29, s30")
    a(f"s_add_u32 s29, s29, {WS_HT}")
    a(f"s_add_u32 s30, s29, {2*131072}")
    a("s_waitcnt lgkmcnt(0)")
    a("s_barrier")
    a("ds_read_b128 v[24:27], v18")
    a("ds_read_b128 v[28:31], v18 offset:1024")
    a("ds_read_b64_tr_b16 v[32:33], v20")
    a(f"ds_read_b64_tr_b16 v[34:35], v20 offset:{4*RS}")
    a("ds_read_b64_tr_b16 v[36:37], v20 offset:128")
    a(f"ds_read_b64_tr_b16 v[38:39], v20 offset:{4*RS+128}")
    a("s_waitcnt lgkmcnt(5)")
    a("buffer_store_dwordx4 v[24:27], v19, s[12:15], s26 offen")
    a("s_waitcnt lgkmcnt(4)")
    a("buffer_store_dwordx4 v[28:31], v19, s[12:15], s27 offen")
    a("s_waitcnt lgkmcnt(2)")
    a("buffer_store_dwordx4 v[32:35], v21, s[12:15], s29 offen")
    a("s_waitcnt lgkmcnt(0)")
    a("buffer_store_dwordx4 v[36:39], v21, s[12:15], s30 offen")
    a(f"L_{name}_end:")
    a("s_endpgm")
    return dict(grid=256, block=512, lds=16 * RS)

def gemm_regs(frag=16):
    return dict(lane=1, vDP=2, vDW=[3, 4, 5, 6], vAPb=7, vAWb=[8, 9], vAP=10, vAW=[11, 12],
                vt=[13, 14, 15, 16], frag=frag,
                sP=4, sW=8, s_w=16, s_soffP=17, s_soffW=18, s_m0P=19, s_m0W=20, s_wslot=21, s_rslot=22, s_cnt=23,
                s_wp=24, s_ww=25, st=[26, 27])

def pack_store_tile(a, c, tmp, vaddr, ssrd, soff, imm=0):
    for j in range(8):
        a(f"v_cvt_pk_bf16_f32 v{tmp+j}, v{c+2*j}, v{c+2*j+1}")
    a(f"buffer_store_dwordx4 v[{tmp}:{tmp+3}], v{vaddr}, s[{ssrd}:{ssrd+3}], s{soff} offen offset:{imm}")
    a(f"buffer_store_dwordx4 v[{tmp+4}:{tmp+7}], v{vaddr}, s[{ssrd}:{ssrd+3}], s{soff} offen offset:{imm+1024}")

def k_gemm1(a, name, opt):
    kernel_begin(a, name)
    gq = {o: G(256, 256, opt["q_bk"], opt["q_ns"], 2, 4, o, False, 3072 * 2, dma_first=opt.get("q_df"), rd_rate=opt.get("rate", 2)) for o in ("WP", "PW")}
    gm = G(256, 128, opt["m_bk"], opt["m_ns"], opt["m_wp"], opt["m_ww"], "WP", False, 3584 * 2, dma_first=opt.get("m_df"), rd_rate=opt.get("rate", 2))
    R = gemm_regs(frag=16)
    ACC = 16 + 2 * gq["WP"].nfrag
    a("s_cmp_ge_u32 s2, 208")
    a(f"s_cbranch_scc1 L_{name}_end")
    a(f"s_load_dwordx2 s[28:29], s[0:1], {KA['ws']}")
    a(f"s_load_dwordx2 s[30:31], s[0:1], {KA['wqkv']}")
    a(f"s_load_dwordx2 s[32:33], s[0:1], {KA['w1']}")
    a(f"s_load_dwordx2 s[34:35], s[0:1], {KA['b1']}")
    a("v_and_b32 v1, 63, v0")
    a("v_lshrrev_b32 v13, 6, v0")
    a("v_readfirstlane_b32 s16, v13")
    a("s_and_b32 s36, s2, 7")
    a("s_lshr_b32 s37, s2, 3")
    a("s_cmp_lt_u32 s37, 14")
    a(f"s_cbranch_scc1 L_{name}_mlp")
    g = gq["WP"]
    a("s_sub_u32 s37, s37, 14")
    a("s_and_b32 s38, s36, 1")
    a("s_lshl_b32 s38, s38, 2")
    a("s_and_b32 s39, s37, 3")
    a("s_add_u32 s38, s38, s39")
    a("s_lshr_b32 s39, s36, 1")
    a("s_mul_i32 s39, s39, 3")
    a("s_lshr_b32 s40, s37, 2")
    a("s_add_u32 s39, s39, s40")
    a(f"s_lshr_b32 s24, s16, {log2(g.WW)}")
    a(f"s_and_b32 s25, s16, {g.WW-1}")
    gemm_setup(a, g, R)
    a("s_waitcnt lgkmcnt(0)")
    a("s_lshl_b32 s40, s38, 3")
    a("s_add_u32 s40, s40, s16")
    a("s_lshl_b32 s40, s40, 16")
    srd_s(a, 4, 28, 29, 65536, 40)
    a("s_mov_b32 s17, 0")
    srd(a, 8, 30, 31, 1024 * 3072 * 2)
    a(f"s_mul_i32 s18, s16, {g.nwd*g.RP*g.ldw}")
    a("s_lshl_b32 s40, s39, 9")
    a("s_add_u32 s18, s18, s40")
    gemm_prologue_dma(a, g, R)
    for i in range(g.nP * g.nW * 16):
        a(f"v_mov_b32 v{ACC+i}, 0")
    srd(a, 12, 28, 29, 12 << 20, WS_QKV)
    acc = lambda i, j: ACC + (i * g.nW + j) * 16
    a("s_cmp_ge_u32 s39, 8")
    a(f"s_cbranch_scc1 L_{name}_v")
    gemm_loop(a, gq["WP"], R, 1024 // g.BK, name + "_qk", acc)
    a(f"s_branch L_{name}_qepi")
    a(f"L_{name}_v:")
    gemm_loop(a, gq["PW"], R, 1024 // g.BK, name + "_vv", acc)
    a(f"L_{name}_qepi:")
    a("s_nop 15")
    a("s_lshl_b32 s40, s39, 3")
    a(f"s_mul_i32 s41, s25, {g.nW}")
    a("s_add_u32 s40, s40, s41")
    a("s_lshl_b32 s40, s40, 6")
    a("s_lshl_b32 s41, s38, 3")
    a("s_add_u32 s40, s40, s41")
    a(f"s_mul_i32 s41, s24, {g.nP}")
    a("s_add_u32 s40, s40, s41")
    a("s_lshl_b32 s40, s40, 11")
    n = 0
    for j in range(g.nW):
        for i in range(g.nP):
            if i % 2 == 0:
                a(f"s_add_u32 s41, s40, {j*64*2048 + i*2048}")
            pack_store_tile(a, acc(i, j), 16 + 8 * (n % 4), R["vDP"], 12, 41, (i % 2) * 2048)
            n += 1
    a("s_endpgm")
    a(f"L_{name}_mlp:")
    g = gm
    ACCM = 16 + 2 * g.nfrag
    a("s_cmp_ge_u32 s37, 7")
    a("s_cselect_b32 s38, 1, 0")
    a("s_mul_i32 s39, s38, 7")
    a("s_sub_u32 s39, s37, s39")
    a("s_and_b32 s40, s36, 1")
    a("s_lshl_b32 s40, s40, 1")
    a("s_add_u32 s38, s38, s40")
    a("s_lshr_b32 s40, s36, 1")
    a("s_mul_i32 s40, s40, 7")
    a("s_add_u32 s39, s39, s40")
    a(f"s_lshr_b32 s24, s16, {log2(g.WW)}")
    a(f"s_and_b32 s25, s16, {g.WW-1}")
    gemm_setup(a, g, R)
    a("s_waitcnt lgkmcnt(0)")
    a("s_lshl_b32 s40, s38, 3")
    a("s_add_u32 s40, s40, s16")
    a("s_lshl_b32 s40, s40, 17")
    a(f"s_add_u32 s40, s40, {WS_HT}")
    srd_s(a, 4, 28, 29, 131072, 40)
    a("s_mov_b32 s17, 0")
    srd(a, 8, 32, 33, 2048 * 3584 * 2)
    a(f"s_mul_i32 s18, s16, {g.nwd*g.RP*g.ldw}")
    a("s_lshl_b32 s40, s39, 8")
    a("s_add_u32 s18, s18, s40")
    gemm_prologue_dma(a, g, R)
    BIAS = ACCM + g.nP * g.nW * 16
    srd(a, 44, 34, 35, 3584 * 2)
    a("v_lshrrev_b32 v13, 5, v1")
    a("v_lshlrev_b32 v13, 3, v13")
    a(f"s_mul_i32 s41, s25, {g.nW*64}")
    a("s_add_u32 s41, s41, s40")
    for j in range(g.nW):
        for q in range(4):
            b = BIAS + j * 8 + q * 2
            a(f"buffer_load_dwordx2 v[{b}:{b+1}], v13, s[44:47], s41 offen offset:{j*64+q*16}")
    for i in range(g.nP * g.nW * 16):
        a(f"v_mov_b32 v{ACCM+i}, 0")
    srd(a, 12, 28, 29, 8 << 20, WS_U)
    acc = lambda i, j: ACCM + (i * g.nW + j) * 16
    gemm_loop(a, g, R, 2048 // g.BK, name + "_m1", acc, extra_vm=g.nW * 4)
    a("s_nop 15")
    c0 = -2.0 * 0.7978845608028654 * 1.4426950408889634
    a(f"s_mov_b32 s42, {f32(c0)}")
    a(f"s_mov_b32 s43, {f32(c0*0.044715)}")
    a("s_mov_b32 s48, 0xffff0000")
    a("s_lshl_b32 s40, s38, 3")
    a(f"s_mul_i32 s41, s24, {g.nP}")
    a("s_add_u32 s40, s40, s41")
    a("s_mul_i32 s40, s40, 224")
    a("s_lshl_b32 s41, s39, 3")
    a("s_add_u32 s40, s40, s41")
    a(f"s_mul_i32 s41, s25, {g.nW*2}")
    a("s_add_u32 s40, s40, s41")
    a("s_lshl_b32 s40, s40, 10")
    BF = 16
    a("v_mov_b32 v14, s42")
    n = 0
    for j in range(g.nW):
        for q in range(8):
            src = BIAS + j * 8 + q
            a(f"v_lshlrev_b32 v{BF+2*q}, 16, v{src}")
            a(f"v_and_b32 v{BF+2*q+1}, s48, v{src}")
        for i in range(g.nP):
            c = acc(i, j)
            T = 32
            for e in range(16):
                a(f"v_add_f32 v{c+e}, v{c+e}, v{BF+e}")
            for e in range(16):
                a(f"v_mul_f32 v{T+e}, v{c+e}, v{c+e}")
            for e in range(16):
                a(f"v_fma_f32 v{T+e}, v{T+e}, s43, v14")
            for e in range(16):
                a(f"v_mul_f32 v{T+e}, v{T+e}, v{c+e}")
            for e in range(16):
                a(f"v_exp_f32 v{T+e}, v{T+e}")
            for e in range(16):
                a(f"v_add_f32 v{T+e}, 1.0, v{T+e}")
            for e in range(16):
                a(f"v_rcp_f32 v{T+e}, v{T+e}")
            for e in range(16):
                a(f"v_mul_f32 v{c+e}, v{c+e}, v{T+e}")
            a(f"s_add_u32 s41, s40, {(i*224 + 2*j)*1024}")
            for e in range(8):
                a(f"v_cvt_pk_bf16_f32 v{c+e}, v{c+2*e}, v{c+2*e+1}")
            a(f"buffer_store_dwordx4 v[{c}:{c+3}], v{R['vDP']}, s[12:15], s41 offen")
            a(f"buffer_store_dwordx4 v[{c+4}:{c+7}], v{R['vDP']}, s[12:15], s41 offen offset:1024")
    a(f"L_{name}_end:")
    a("s_endpgm")
    return dict(grid=208, block=512, lds=max(gq["WP"].lds, gm.lds))

def k_attn(a, name):
    kernel_begin(a, name)
    S = 0; KF = 144; Q = 216; O = 224; M = 240
    a("s_cmp_ge_u32 s2, 512")
    a(f"s_cbranch_scc1 L_{name}_end")
    a(f"s_load_dwordx2 s[4:5], s[0:1], {KA['ws']}")
    a("v_lshrrev_b32 v241, 6, v0")
    a("v_readfirstlane_b32 s16, v241")
    a("v_and_b32 v242, 63, v0")
    a("v_lshlrev_b32 v240, 4, v242")
    a("s_and_b32 s17, s2, 7")
    a("s_lshr_b32 s18, s2, 3")
    a("s_lshl_b32 s17, s17, 2")
    a("s_lshr_b32 s19, s18, 4")
    a("s_add_u32 s17, s17, s19")
    a("s_and_b32 s18, s18, 15")
    a("s_lshl_b32 s18, s18, 2")
    a("s_add_u32 s18, s18, s16")
    a("s_waitcnt lgkmcnt(0)")
    srd(a, 8, 4, 5, 12 << 20, WS_QKV)
    srd(a, 12, 4, 5, 4 << 20, WS_O)
    a("s_lshl_b32 s19, s17, 17")
    a("s_lshl_b32 s20, s18, 11")
    a("s_add_u32 s20, s20, s19")
    a(f"buffer_load_dwordx4 v[{Q}:{Q+3}], v240, s[8:11], s20 offen")
    a(f"buffer_load_dwordx4 v[{Q+4}:{Q+7}], v240, s[8:11], s20 offen offset:1024")
    a("s_sub_u32 s21, s18, 8")
    a(f"s_add_u32 s22, s19, {32*131072}")
    for t in range(9):
        a(f"s_add_i32 s{32+t}, s21, {t}")
        a(f"s_max_i32 s{32+t}, s{32+t}, 0")
        a(f"s_lshl_b32 s{32+t}, s{32+t}, 11")
        a(f"s_add_u32 s{32+t}, s{32+t}, s22")
        k = KF + 8 * t
        a(f"buffer_load_dwordx4 v[{k}:{k+3}], v240, s[8:11], s{32+t} offen")
        a(f"buffer_load_dwordx4 v[{k+4}:{k+7}], v240, s[8:11], s{32+t} offen offset:1024")
        a(f"s_add_u32 s{32+t}, s{32+t}, {32*131072}")
    a("v_and_b32 v243, 31, v242")
    a("v_lshrrev_b32 v244, 5, v242")
    a("v_lshlrev_b32 v244, 2, v244")
    a("v_sub_u32 v243, v243, v244")
    BIG = f32(-1e30)
    a(f"v_mov_b32 v245, {BIG}")
    for j in range(16):
        kl = (j & 3) + 8 * (j >> 2)
        a(f"v_cmp_le_i32 vcc, {kl}, v243")
        a(f"v_cndmask_b32 v{S+128+j}, v245, 0, vcc") if False else None
        a(f"v_cndmask_b32_e64 v{S+128+j}, v245, 0, vcc")
        a(f"v_cndmask_b32_e64 v{S+j}, 0, v245, vcc")
    for i in range(16):
        a(f"v_mov_b32 v{O+i}, 0")
    for t in range(9):
        k = KF + 8 * t; s = S + 16 * t
        a(f"s_waitcnt vmcnt({min(63, 16 - 2*t + 2*t)})") if False else None
        a(f"s_waitcnt vmcnt({2*(8-t) + 2*t})")
        if t < 8:
            a(f"s_cmp_lt_i32 s21, {-t}")
            a(f"s_cbranch_scc1 L_{name}_neg{t}")
        c0 = f"v[{s}:{s+15}]" if t in (0, 8) else "0"
        a(f"v_mfma_f32_32x32x16_bf16 v[{s}:{s+15}], v[{k}:{k+3}], v[{Q}:{Q+3}], {c0}")
        a(f"v_mfma_f32_32x32x16_bf16 v[{s}:{s+15}], v[{k+4}:{k+7}], v[{Q+4}:{Q+7}], v[{s}:{s+15}]")
        if t < 8:
            a(f"s_branch L_{name}_done{t}")
            a(f"L_{name}_neg{t}:")
            for j in range(16):
                a(f"v_mov_b32 v{s+j}, v245")
            a(f"L_{name}_done{t}:")
        a(f"buffer_load_dwordx4 v[{k}:{k+3}], v240, s[8:11], s{32+t} offen")
        a(f"buffer_load_dwordx4 v[{k+4}:{k+7}], v240, s[8:11], s{32+t} offen offset:1024")
    a("s_nop 12")
    mx = [246, 247, 248, 249]
    for c in range(4):
        a(f"v_max3_f32 v{mx[c]}, v{S+c*36}, v{S+c*36+1}, v{S+c*36+2}")
    for e in range(3, 35, 2):
        for c in range(4):
            a(f"v_max3_f32 v{mx[c]}, v{mx[c]}, v{S+c*36+e}, v{S+c*36+e+1}")
    for c in range(4):
        a(f"v_max_f32 v{mx[c]}, v{mx[c]}, v{S+c*36+35}")
    a(f"v_max3_f32 v246, v246, v247, v248")
    a(f"v_max_f32 v246, v246, v249")
    a("v_mov_b32 v247, v246")
    a("v_permlane32_swap_b32 v246, v247")
    a("v_max_f32 v246, v246, v247")
    cs = 32 ** -0.5 * 1.4426950408889634
    a(f"s_mov_b32 s24, {f32(cs)}")
    a("v_mul_f32 v246, s24, v246")
    a("v_mov_b32 v250, 0")
    a("v_mov_b32 v251, 0")
    a("v_mov_b32 v252, 0")
    a("v_mov_b32 v253, 0")
    for t in range(9):
        k = KF + 8 * t; s = S + 16 * t
        for j in range(16):
            a(f"v_fma_f32 v{s+j}, v{s+j}, s24, -v246")
        for j in range(16):
            a(f"v_exp_f32 v{s+j}, v{s+j}")
        for j in range(0, 16, 4):
            a(f"v_pk_add_f32 v[250:251], v[250:251], v[{s+j}:{s+j+1}]")
            a(f"v_pk_add_f32 v[252:253], v[252:253], v[{s+j+2}:{s+j+3}]")
        for j in range(8):
            a(f"v_cvt_pk_bf16_f32 v{s+j}, v{s+2*j}, v{s+2*j+1}")
        a(f"s_waitcnt vmcnt({2*(8-t)})")
        a(f"v_mfma_f32_32x32x16_bf16 v[{O}:{O+15}], v[{k}:{k+3}], v[{s}:{s+3}], v[{O}:{O+15}]")
        a(f"v_mfma_f32_32x32x16_bf16 v[{O}:{O+15}], v[{k+4}:{k+7}], v[{s+4}:{s+7}], v[{O}:{O+15}]")
    a("v_pk_add_f32 v[250:251], v[250:251], v[252:253]")
    a("v_add_f32 v250, v250, v251")
    a("v_mov_b32 v251, v250")
    a("v_permlane32_swap_b32 v250, v251")
    a("v_add_f32 v250, v250, v251")
    a("v_rcp_f32 v250, v250")
    a("s_lshl_b32 s25, s18, 6")
    a("s_lshl_b32 s26, s17, 1")
    a("s_add_u32 s25, s25, s26")
    a("s_lshl_b32 s25, s25, 10")
    for j in range(16):
        a(f"v_mul_f32 v{O+j}, v{O+j}, v250")
    pack_store_tile(a, O, 0, 240, 12, 25)
    a(f"L_{name}_end:")
    a("s_endpgm")
    return dict(grid=512, block=256, lds=0)

def k_final(a, name, opt):
    kernel_begin(a, name)
    g2 = G(64, 128, opt["f_bk"], opt["f_ns"], 2, 2, "PW", True, 2048 * 2, dma_first=opt.get("f_df"), rd_rate=opt.get("frate", 3))
    go = G(128, 64, opt["f_bk"], opt["f_ns"], 2, 2, "WP", True, 1024 * 2, dma_first=opt.get("f_df"), rd_rate=opt.get("frate", 3))
    R = gemm_regs(frag=16)
    ACC = 16 + 2 * g2.nfrag
    XR = ACC + 32
    B2 = XR + 16
    VX = B2 + 2
    a("s_cmp_ge_u32 s2, 256")
    a(f"s_cbranch_scc1 L_{name}_end")
    a(f"s_load_dwordx2 s[28:29], s[0:1], {KA['ws']}")
    a(f"s_load_dwordx2 s[30:31], s[0:1], {KA['w2']}")
    a(f"s_load_dwordx2 s[32:33], s[0:1], {KA['wo']}")
    a(f"s_load_dwordx2 s[34:35], s[0:1], {KA['b2']}")
    a(f"s_load_dwordx2 s[50:51], s[0:1], {KA['x']}")
    a(f"s_load_dwordx2 s[52:53], s[0:1], {KA['out']}")
    a("v_and_b32 v1, 63, v0")
    a("v_lshrrev_b32 v13, 6, v0")
    a("v_readfirstlane_b32 s16, v13")
    a("s_and_b32 s36, s2, 7")
    a("s_lshr_b32 s37, s2, 3")
    a("s_lshr_b32 s38, s36, 1")
    a("s_lshl_b32 s38, s38, 2")
    a("s_and_b32 s39, s37, 3")
    a("s_add_u32 s38, s38, s39")
    a("s_and_b32 s39, s36, 1")
    a("s_lshl_b32 s39, s39, 3")
    a("s_lshr_b32 s40, s37, 2")
    a("s_add_u32 s39, s39, s40")
    a("s_lshr_b32 s54, s16, 1")
    a("s_and_b32 s55, s16, 1")
    g = g2
    a("s_mov_b32 s24, s55")
    a("s_mov_b32 s25, s54")
    gemm_setup(a, g, R)
    a("s_waitcnt lgkmcnt(0)")
    def p_srd(g, tile_s, rows32, kbytes, base):
        per = g.KS // g.npd
        a(f"s_lshr_b32 s40, s16, {log2(per)}")
        a(f"s_mul_i32 s41, s{tile_s}, {rows32}")
        a("s_add_u32 s40, s40, s41")
        a(f"s_mul_i32 s40, s40, {kbytes}")
        a(f"s_add_u32 s40, s40, {base}")
        srd_s(a, 4, 28, 29, kbytes, 40)
        a(f"s_and_b32 s17, s16, {per-1}")
        a(f"s_mul_i32 s17, s17, {g.npd*1024}")
    p_srd(g, 39, 2, 224 * 1024, WS_U)
    srd(a, 8, 30, 31, 3584 * 2048 * 2)
    a(f"s_mul_i32 s18, s16, {g.nwd*g.RP*g.ldw}")
    a("s_lshl_b32 s40, s38, 8")
    a("s_add_u32 s18, s18, s40")
    gemm_prologue_dma(a, g, R)
    srd(a, 44, 50, 51, 2048 * 1024 * 2)
    srd(a, 56, 34, 35, 2048 * 2)
    srd(a, 12, 52, 53, 2048 * 1024 * 2)
    a(f"v_and_b32 v13, 31, v1")
    a(f"v_lshlrev_b32 v{VX}, 11, v13")
    a("v_lshrrev_b32 v14, 5, v1")
    a(f"v_lshl_add_u32 v{VX}, v14, 4, v{VX}")
    a("s_lshl_b32 s40, s38, 7")
    a("s_lshl_b32 s41, s54, 6")
    a("s_add_u32 s40, s40, s41")
    a("s_lshl_b32 s42, s40, 1")
    a("s_lshl_b32 s40, s40, 11")
    a("s_lshl_b32 s41, s39, 7")
    a("s_add_u32 s40, s40, s41")
    a("s_lshl_b32 s41, s55, 6")
    a("s_add_u32 s60, s40, s41")
    a(f"s_add_u32 s61, s60, {32*2048}")
    a("v_lshlrev_b32 v13, 1, v13")
    for i in range(2):
        for p in range(2):
            r = XR + i * 8 + p * 4
            a(f"buffer_load_dwordx4 v[{r}:{r+3}], v{VX}, s[44:47], s{60+i} offen offset:{p*32}")
        a(f"buffer_load_ushort v{B2+i}, v13, s[56:59], s42 offen offset:{i*64}")
    for i in range(32):
        a(f"v_mov_b32 v{ACC+i}, 0")
    gemm_loop(a, g, R, 3584 // g.BK, name + "_m2", lambda i, j: ACC + j * 16, extra_vm=6)
    a("s_barrier")
    g = go
    a("s_mov_b32 s24, s54")
    a("s_mov_b32 s25, s55")
    gemm_setup(a, g, R)
    p_srd(g, 38, 4, 64 * 1024, WS_O)
    srd(a, 8, 32, 33, 1024 * 1024 * 2)
    a(f"s_mul_i32 s18, s16, {g.nwd*g.RP*g.ldw}")
    a("s_lshl_b32 s40, s39, 7")
    a("s_add_u32 s18, s18, s40")
    gemm_prologue_dma(a, g, R)
    gemm_loop(a, g, R, 1024 // g.BK, name + "_wo", lambda i, j: ACC + i * 16)
    a("s_nop 15")
    a("s_mov_b32 s48, 0xffff0000")
    for i in range(2):
        c = ACC + i * 16
        a(f"v_lshlrev_b32 v{B2+i}, 16, v{B2+i}")
        for p in range(2):
            for e in range(4):
                a(f"v_permlane32_swap_b32 v{c+8*p+e}, v{c+8*p+4+e}")
        for p in range(2):
            r = XR + i * 8 + p * 4
            for e in range(4):
                a(f"v_lshlrev_b32 v16, 16, v{r+e}")
                a(f"v_and_b32 v17, s48, v{r+e}")
                a(f"v_add_f32 v16, v16, v{B2+i}")
                a(f"v_add_f32 v17, v17, v{B2+i}")
                a(f"v_add_f32 v16, v16, v{c+8*p+2*e}")
                a(f"v_add_f32 v17, v17, v{c+8*p+2*e+1}")
                a(f"v_cvt_pk_bf16_f32 v{r+e}, v16, v17")
            a(f"buffer_store_dwordx4 v[{r}:{r+3}], v{VX}, s[12:15], s{60+i} offen offset:{p*32}")
    a(f"L_{name}_end:")
    a("s_endpgm")
    return dict(grid=256, block=256, lds=max(g2.lds, go.lds))

DEFAULT = dict(q_bk=32, q_ns=4, m_bk=64, m_ns=3, m_wp=4, m_ww=2, f_bk=64, f_ns=4)

def build(opt=None, only=None):
    o = dict(DEFAULT); o.update(opt or {})
    a = Asm()
    a('.amdgcn_target "amdgcn-amd-amdhsa--gfx950"')
    a(".text")
    ks = []
    for nm, fn in (("ln_kernel", lambda n: k_ln(a, n)), ("gemm1_kernel", lambda n: k_gemm1(a, n, o)),
                   ("attn_kernel", lambda n: k_attn(a, n)), ("final_kernel", lambda n: k_final(a, n, o))):
        st = len(a.ins)
        info = fn(nm)
        mv, ms, ma = a.maxreg(st)
        info.update(name=nm, v=mv + 1, s=ms + 1)
        ks.append(info)
    bad = a.verify()
    if bad:
        for b in bad[:20]: print("HAZARD", b, file=sys.stderr)
        raise SystemExit("hazards")
    head = open("cdna_kernels/%s.s.ref" % NAME).read().split("; Override launch")[0]
    out = head
    for k in ks:
        if only is None or k["name"] in only:
            out += f"; @launch kernel={k['name']} grid=({k['grid']},1,1) block=({k['block']},1,1) lds={k['lds']}\n"
    out += a.text()
    out += '.section .rodata,"a"\n'
    for k in ks:
        nv = (k["v"] + 7) // 8 * 8
        out += f""".p2align 6
.amdhsa_kernel {k['name']}
  .amdhsa_next_free_vgpr {nv}
  .amdhsa_next_free_sgpr {max(k['s'], 16)}
  .amdhsa_accum_offset {nv}
  .amdhsa_group_segment_fixed_size 0
  .amdhsa_kernarg_size 88
  .amdhsa_user_sgpr_count 2
  .amdhsa_user_sgpr_kernarg_segment_ptr 1
  .amdhsa_system_sgpr_workgroup_id_x 1
.end_amdhsa_kernel
"""
    return out, ks

if __name__ == "__main__":
    out, ks = build()
    path = sys.argv[1] if len(sys.argv) > 1 else "cdna_kernels/%s.s" % NAME
    open(path, "w").write(out)
    for k in ks: print(k)
```

```python
from asmlib import Asm

def log2(x):
    l = x.bit_length() - 1
    assert 1 << l == x, x
    return l

class G:
    def __init__(s, TP, TW, BK, NS, WP, WW, order, perm, ldw, KG=1, lds_base=0, dma_first=None, rd_rate=2, abl=()):
        s.TP, s.TW, s.BK, s.NS, s.WP, s.WW, s.order, s.perm, s.ldw, s.KG = TP, TW, BK, NS, WP, WW, order, perm, ldw, KG
        s.KS = BK // 16
        s.KSW = s.KS // KG
        assert s.KSW % 2 == 0
        s.nw = WP * WW * KG
        s.WTP = TP // WP; s.WTW = TW // WW
        s.nP = s.WTP // 32; s.nW = s.WTW // 32
        s.Psz = TP * BK * 2; s.Wsz = TW * BK * 2; s.SLOT = s.Psz + s.Wsz
        s.npd = (TP // 32) * s.KS // s.nw
        s.nwd = s.Wsz // 1024 // s.nw
        assert s.npd * s.nw == (TP // 32) * s.KS and s.nwd * s.nw * 1024 == s.Wsz
        assert s.npd <= s.KS and s.KS % s.npd == 0 and s.npd <= 4 and s.nwd <= 4
        s.RP = 512 // TW; s.LPR = TW // 8
        s.nd = s.npd + s.nwd
        s.lds = s.SLOT * NS
        s.lds_base = lds_base
        s.dma_first = s.nd if dma_first is None else min(dma_first, s.nd)
        s.rd_rate = rd_rate
        s.nfrag = (s.nP + s.nW) * 4
        s.abl = set(abl)
        s.nAP = 2 if KG == 2 else 1
        s.ldmod = ""

def wave_coords(a, g, R):
    a(f"s_and_b32 s{R['s_ww']}, s{R['s_w']}, {g.WW-1}")
    a(f"s_lshr_b32 s{R['s_wp']}, s{R['s_w']}, {log2(g.WW)}")
    a(f"s_lshr_b32 s{R['s_kg']}, s{R['s_wp']}, {log2(g.WP)}")
    a(f"s_and_b32 s{R['s_wp']}, s{R['s_wp']}, {g.WP-1}")

def gemm_setup_dma(a, g, R):
    lane = R["lane"]; t0, t1, t2, t3 = R["vt"][:4]; st0, st1 = R["st"][:2]
    a(f"v_lshlrev_b32 v{R['vDP']}, 4, v{lane}")
    a(f"v_lshrrev_b32 v{t0}, {log2(g.LPR)}, v{lane}")
    a(f"v_and_b32 v{t1}, {g.LPR-1}, v{lane}")
    a(f"s_mul_i32 s{st0}, s{R['s_w']}, {g.nwd*g.RP}")
    a(f"s_mov_b32 s{st1}, {g.ldw}")
    for j in range(g.nwd):
        d = R["vDW"][j]
        a(f"v_add_u32 v{t2}, {j*g.RP}, v{t0}")
        a(f"v_add_u32 v{t3}, s{st0}, v{t2}")
        if g.TW >= 128:
            a(f"v_and_b32 v{t3}, 3, v{t3}")
        else:
            a(f"v_bfe_u32 v{t3}, v{t3}, 1, 1")
        a(f"v_lshlrev_b32 v{t3}, 2, v{t3}")
        a(f"v_xor_b32 v{t3}, v{t3}, v{t1}")
        a(f"v_lshlrev_b32 v{t3}, 4, v{t3}")
        a(f"v_mul_lo_u32 v{t2}, v{t2}, s{st1}")
        a(f"v_add_u32 v{d}, v{t2}, v{t3}")
        if j:
            a(f"v_subrev_u32 v{d}, {j*1024}, v{d}")
    a(f"s_mul_i32 s{R['s_m0P']}, s{R['s_w']}, {g.npd*1024}")
    if g.lds_base:
        a(f"s_add_u32 s{R['s_m0P']}, s{R['s_m0P']}, {g.lds_base}")
    a(f"s_mul_i32 s{R['s_m0W']}, s{R['s_w']}, {g.nwd*1024}")
    a(f"s_add_u32 s{R['s_m0W']}, s{R['s_m0W']}, {g.Psz + g.lds_base}")

def gemm_setup_rd(a, g, R):
    lane = R["lane"]; t0, t1, t2, t3 = R["vt"][:4]; st0, st1 = R["st"][:2]
    a(f"v_lshlrev_b32 v{t3}, 4, v{lane}")
    a(f"s_mul_i32 s{st0}, s{R['s_wp']}, {g.nP*g.KS*1024}")
    if g.lds_base:
        a(f"s_add_u32 s{st0}, s{st0}, {g.lds_base}")
    if g.KG == 1:
        a(f"v_add_u32 v{R['vAPb'][0]}, s{st0}, v{t3}")
    else:
        half = (g.nP // 2) * g.KS * 1024
        a(f"s_mul_i32 s{st1}, s{R['s_kg']}, {g.KSW*1024}")
        a(f"s_add_u32 s{st0}, s{st0}, s{st1}")
        a(f"s_mul_i32 s{st1}, s{R['s_kg']}, {half}")
        a(f"s_add_u32 s{st1}, s{st1}, s{st0}")
        a(f"v_add_u32 v{R['vAPb'][0]}, s{st1}, v{t3}")
        a(f"s_mul_i32 s{st1}, s{R['s_kg']}, {half}")
        a(f"s_sub_u32 s{st1}, s{st0}, s{st1}")
        a(f"s_add_u32 s{st1}, s{st1}, {half}")
        a(f"v_add_u32 v{R['vAPb'][1]}, s{st1}, v{t3}")
    a(f"v_bfe_u32 v{t0}, v{lane}, 2, 2")
    a(f"v_lshrrev_b32 v{t1}, 5, v{lane}")
    a(f"v_lshlrev_b32 v{t1}, {2 if g.perm else 3}, v{t1}")
    a(f"v_add_u32 v{t1}, v{t1}, v{t0}")
    a(f"v_lshlrev_b32 v{t1}, {log2(g.TW*2)}, v{t1}")
    a(f"v_and_b32 v{t2}, 3, v{lane}")
    a(f"v_lshlrev_b32 v{t2}, 3, v{t2}")
    a(f"v_add_u32 v{t1}, v{t1}, v{t2}")
    a(f"v_bfe_u32 v{t2}, v{lane}, 4, 1")
    a(f"v_lshlrev_b32 v{t2}, 5, v{t2}")
    a(f"v_add_u32 v{t1}, v{t1}, v{t2}")
    a(f"v_add_u32 v{t1}, {g.Psz + g.lds_base}, v{t1}")
    if g.KG > 1:
        a(f"s_mul_i32 s{st0}, s{R['s_kg']}, {g.KSW*16*g.TW*2}")
        a(f"v_add_u32 v{t1}, s{st0}, v{t1}")
    if g.TW < 128:
        a(f"v_lshrrev_b32 v{t0}, 1, v{t0}")
    a(f"s_mul_i32 s{st0}, s{R['s_ww']}, {g.nW}")
    for i in range(g.nW):
        a(f"s_add_u32 s{st1}, s{st0}, {i}")
        a(f"v_xor_b32 v{t2}, s{st1}, v{t0}")
        a(f"v_lshlrev_b32 v{t2}, 6, v{t2}")
        a(f"v_add_u32 v{R['vAWb'][i]}, v{t1}, v{t2}")

def gemm_setup(a, g, R):
    gemm_setup_dma(a, g, R)
    gemm_setup_rd(a, g, R)

def m0_set(R, base, slot):
    if slot is None:
        return f"s_add_u32 m0, s{base}, s{R['s_wslot']}"
    return f"s_add_u32 m0, s{base}, {slot}"

def dma_items(g, R, slot):
    items = []
    sP, sW = R["sP"], R["sW"]
    for j in range(g.nwd):
        it = [f"buffer_load_dwordx4 v{R['vDW'][j]}, s[{sW}:{sW+3}], s{R['s_soffW']} offen offset:{j*1024} lds"]
        if j == g.nwd - 1: it.append(f"s_add_u32 s{R['s_soffW']}, s{R['s_soffW']}, {g.BK*g.ldw}")
        items.append((m0_set(R, R["s_m0W"], slot), it, j == 0))
    for j in range(g.npd):
        it = [f"buffer_load_dwordx4 v{R['vDP']}, s[{sP}:{sP+3}], s{R['s_soffP']} offen offset:{j*1024}{g.ldmod} lds"]
        if j == g.npd - 1: it.append(f"s_add_u32 s{R['s_soffP']}, s{R['s_soffP']}, {g.KS*1024}")
        items.append((m0_set(R, R["s_m0P"], slot), it, j == 0))
    return items

def flat(items):
    return [([m0] if (start or n == 0) else []) + ins for n, (m0, ins, start) in enumerate(items)]

def frag_regs(g, R, st):
    b = R["frag"] + st * g.nfrag
    P = [b + 4 * i for i in range(g.nP)]
    W = [b + 4 * g.nP + 4 * i for i in range(g.nW)]
    return P, W

def read_items(g, R, ks, st):
    P, W = frag_regs(g, R, st)
    qs = 8 if g.perm else 4
    per = g.nP // g.nAP
    def rp(i):
        return (("P", st, i), f"ds_read_b128 v[{P[i]}:{P[i]+3}], v{R['vAP'][i//per]} offset:{(i%per)*g.KS*1024 + ks*1024}")
    def rw(i, q):
        return (("W", st, i), f"ds_read_b64_tr_b16 v[{W[i]+2*q}:{W[i]+2*q+1}], v{R['vAW'][i]} offset:{(16*ks+q*qs)*g.TW*2}")
    out = [rp(0)]
    for i in range(g.nW):
        out += [rw(i, 0), rw(i, 1)]
    for i in range(1, g.nP):
        out.append(rp(i))
    return out

class LQ:
    def __init__(s): s.q = []
    def push(s, tag): s.q.append(tag)
    def wait(s, a, tags):
        idx = -1
        for n, t in enumerate(s.q):
            if t in tags: idx = n
        if idx >= 0:
            cnt = len(s.q) - idx - 1
            a(f"s_waitcnt lgkmcnt({min(cnt,15)})")
            s.q = s.q[idx + 1:]
    def clear(s): s.q = []

def gemm_prologue_dma(a, g, R):
    return prologue_dma(a, Stream(g, R, None))

class Stream:
    def __init__(s, g, R, acc): s.g, s.R, s.acc = g, R, acc
    def reads(s, ks, st): return s.g.read_items(s.R, ks, st) if hasattr(s.g, "read_items") else read_items(s.g, s.R, ks, st)
    def dmas(s, slot=None): return s.g.dma_items(s.R, slot) if hasattr(s.g, "dma_items") else dma_items(s.g, s.R, slot)
    def mfmas(s, st):
        g = s.g
        if hasattr(g, "mfma_list"): return g.mfma_list(s.R, st, s.acc)
        P, W = frag_regs(g, s.R, st)
        out = []
        for i in range(g.nP):
            for j in range(g.nW):
                A, B = (P[i], W[j]) if g.order == "PW" else (W[j], P[i])
                out.append(({("P", st, i), ("W", st, j)}, s.acc(i, j), A, B))
        return out
    def addr_update(s, mov=False):
        g, R = s.g, s.R
        out = []
        for i in range(g.nAP):
            out.append(f"v_mov_b32 v{R['vAP'][i]}, v{R['vAPb'][i]}" if mov else f"v_add_u32 v{R['vAP'][i]}, s{R['s_rslot']}, v{R['vAPb'][i]}")
        for i in range(getattr(g, "nAW", g.nW)):
            out.append(f"v_mov_b32 v{R['vAW'][i]}, v{R['vAWb'][i]}" if mov else f"v_add_u32 v{R['vAW'][i]}, s{R['s_rslot']}, v{R['vAWb'][i]}")
        return out

def gemm_entry(a, S, vm):
    a(f"s_waitcnt vmcnt({min(63, vm)})")
    a("s_barrier")
    a(f"s_mov_b32 s{S.R['s_rslot']}, 0")
    for x in S.addr_update(mov=True): a(x)
    for t, x in S.reads(0, 0): a(x)

def gemm_iter(a, cur, nxt, rest_s, first_s, count, tag, vm, hook=None):
    g, R = cur.g, cur.R
    abl = g.abl
    lq = LQ()
    for t, x in cur.reads(0, 0): lq.push(t)
    if count > 1:
        a(f"s_mov_b32 s{R['s_cnt']}, {count}")
        a(f"L_{tag}:")
    df = g.dma_first
    first = flat(first_s.dmas()[:df]) if first_s else []
    rest = flat(rest_s.dmas()[df:]) if rest_s else []
    KS = g.KSW
    per = [[] for _ in range(KS)]
    per[KS - 1] = first
    for k, it in enumerate(rest):
        per[(k * (KS - 1)) // len(rest)].append(it)
    for ks in range(KS):
        st = ks & 1
        if ks == KS - 1:
            a(f"s_waitcnt vmcnt({min(63, vm)}) lgkmcnt(0)")
            lq.clear()
            if "nobar" not in abl: a("s_barrier")
            pre = [f"s_mov_b32 s{R['s_wslot']}, s{R['s_rslot']}",
                   f"s_add_u32 s{R['s_rslot']}, s{R['s_rslot']}, {g.SLOT}",
                   f"s_cmp_eq_u32 s{R['s_rslot']}, {g.SLOT*g.NS}",
                   f"s_cselect_b32 s{R['s_rslot']}, 0, s{R['s_rslot']}"] + nxt.addr_update()
            reads = nxt.reads(0, st ^ 1)
        else:
            pre = []
            reads = cur.reads(ks + 1, st ^ 1)
        side = [("r", t, x) for t, x in reads] + [("d", None, it) for it in per[ks]]
        mf = cur.mfmas(st)
        for m, (tags, c, A, B) in enumerate(mf):
            lq.wait(a, tags)
            if "nomfma" not in abl:
                a(f"v_mfma_f32_32x32x16_bf16 v[{c}:{c+15}], v[{A}:{A+3}], v[{B}:{B+3}], v[{c}:{c+15}]")
            if m == 0:
                for x in pre: a(x)
            budget = g.rd_rate
            last = m == len(mf) - 1
            while side and (budget > 0 or last):
                kind, t, x = side.pop(0)
                if kind == "r":
                    if "noread" not in abl: a(x)
                    lq.push(t); budget -= 1
                else:
                    for y in x:
                        if "nodma" in abl and y.startswith("buffer_load"): continue
                        a(y)
                    budget -= g.rd_rate
    assert lq.q == [t for t, x in nxt.reads(0, 0)]
    if count > 1:
        a(f"s_sub_u32 s{R['s_cnt']}, s{R['s_cnt']}, 1")
        a(f"s_cmp_lg_u32 s{R['s_cnt']}, 0")
        a(f"s_cbranch_scc1 L_{tag}")

def prologue_dma(a, S):
    g, R = S.g, S.R
    for st in range(g.NS - 1):
        for it in flat(S.dmas(st * g.SLOT)):
            for x in it: a(x)
    a(f"s_mov_b32 s{R['s_wslot']}, {(g.NS-1)*g.SLOT}")
    for it in flat(S.dmas()[:g.dma_first]):
        for x in it: a(x)
    return (g.NS - 1) * g.nd + g.dma_first

def gemm_loop(a, g, R, NK, tag, acc, extra_vm=0):
    S = Stream(g, R, acc)
    n = g.nd
    gemm_entry(a, S, (g.NS - 2) * n + g.dma_first + extra_vm)
    gemm_iter(a, S, S, S, S, NK, tag, (g.NS - 2) * n)
    a("s_waitcnt vmcnt(0) lgkmcnt(0)")

def gemm_chain(a, S1, N1, S2, N2, tag, extra_vm=0):
    g = S1.g; n = g.nd; NS = g.NS
    assert S2.g.SLOT == g.SLOT and S2.g.nd == n and S2.g.NS == NS and S2.g.dma_first == g.dma_first and S2.g.KSW == g.KSW
    vm = (NS - 2) * n
    gemm_entry(a, S1, vm + g.dma_first + extra_vm)
    gemm_iter(a, S1, S1, S1, S1, N1 - NS, tag + "_a", vm)
    gemm_iter(a, S1, S1, S1, S2, 1, tag + "_b", vm)
    if NS > 2:
        gemm_iter(a, S1, S1, S2, S2, NS - 2, tag + "_c", vm)
    gemm_iter(a, S1, S2, S2, S2, 1, tag + "_d", vm)
    gemm_iter(a, S2, S2, S2, S2, N2, tag + "_e", vm)
    a("s_waitcnt vmcnt(0) lgkmcnt(0)")

def kgroup_reduce(a, g, R, acc, tmp):
    assert g.KG == 2
    half = g.nP // 2
    ntile = half * g.nW
    per_wave = ntile * 4096
    va, vb = R["vt"][0], R["vt"][1]
    st0 = R["st"][0]
    a("s_barrier")
    a(f"s_mul_i32 s{st0}, s{R['s_w']}, {per_wave}")
    a(f"v_lshlrev_b32 v{vb}, 4, v{R['lane']}")
    a(f"v_add_u32 v{va}, s{st0}, v{vb}")
    a(f"s_xor_b32 s{st0}, s{R['s_w']}, {g.WP*g.WW}")
    a(f"s_mul_i32 s{st0}, s{st0}, {per_wave}")
    a(f"v_add_u32 v{vb}, s{st0}, v{vb}")
    n = 0
    for i in range(half):
        for j in range(g.nW):
            c = acc(i + half, j)
            for q in range(4):
                a(f"ds_write_b128 v{va}, v[{c+4*q}:{c+4*q+3}] offset:{n*1024}")
                n += 1
    a("s_waitcnt lgkmcnt(0)")
    a("s_barrier")
    n = 0
    for i in range(half):
        for j in range(g.nW):
            c = acc(i + half, j)
            for q in range(4):
                a(f"ds_read_b128 v[{c+4*q}:{c+4*q+3}], v{vb} offset:{n*1024}")
                n += 1
    tot = n; n = 0
    for i in range(half):
        for j in range(g.nW):
            c = acc(i + half, j); d = acc(i, j)
            for q in range(4):
                n += 1
                a(f"s_waitcnt lgkmcnt({min(15, tot-n)})")
                a(f"v_pk_add_f32 v[{d+4*q}:{d+4*q+1}], v[{d+4*q}:{d+4*q+1}], v[{c+4*q}:{c+4*q+1}]")
                a(f"v_pk_add_f32 v[{d+4*q+2}:{d+4*q+3}], v[{d+4*q+2}:{d+4*q+3}], v[{c+4*q+2}:{c+4*q+3}]")
```

```python
import sys, struct
from asmlib import Asm
from gemm import *

NAME = "parallel_sum__sliding_block__mixer_token_mlp__prompt"
WS_XN = 0
WS_HT = 4 << 20
WS_QKV = 8 << 20
WS_U = 20 << 20
WS_O = 28 << 20
WS_PART = 32 << 20
WS_BYTES = 256 << 20
KA = dict(x=0, wqkv=8, wo=16, bx=24, w1=32, b1=40, w2=48, b2=56, out=64, dbg=72, ws=80)

def f32(x):
    return "0x%08x" % struct.unpack("<I", struct.pack("<f", x))[0]

def kernel_begin(a, name):
    a(f".globl {name}\n.p2align 8\n.type {name},@function\n{name}:")

def srd(a, d, lo, hi, nbytes, off=0):
    if off:
        a(f"s_add_u32 s{d}, s{lo}, {off}")
        a(f"s_addc_u32 s{d+1}, s{hi}, 0")
        a(f"s_and_b32 s{d+1}, s{d+1}, 0xffff")
    else:
        a(f"s_mov_b32 s{d}, s{lo}")
        a(f"s_and_b32 s{d+1}, s{hi}, 0xffff")
    a(f"s_mov_b32 s{d+2}, {nbytes}")
    a(f"s_mov_b32 s{d+3}, 0x20000")

def srd_s(a, d, lo, hi, nbytes, soff):
    a(f"s_add_u32 s{d}, s{lo}, s{soff}")
    a(f"s_addc_u32 s{d+1}, s{hi}, 0")
    a(f"s_and_b32 s{d+1}, s{d+1}, 0xffff")
    a(f"s_mov_b32 s{d+2}, {nbytes}")
    a(f"s_mov_b32 s{d+3}, 0x20000")

def prefetch_linear(a, slo, shi, nbytes, start, end, sgw, nwaves, vl, vd, ssrd, st, gran=64):
    ch = 64 * gran
    n = (end - start + ch * nwaves - 1) // (ch * nwaves)
    srd(a, ssrd, slo, shi, end)
    a(f"s_mul_i32 s{st}, s{sgw}, {ch}")
    if start: a(f"s_add_u32 s{st}, s{st}, {start}")
    for i in range(n):
        a(f"buffer_load_dword v{vd}, v{vl}, s[{ssrd}:{ssrd+3}], s{st} offen")
        if i != n - 1: a(f"s_add_u32 s{st}, s{st}, {ch*nwaves}")

def wave_sum(a, v, t, sdst):
    for ctl in ("quad_perm:[1,0,3,2]", "quad_perm:[2,3,0,1]", "row_half_mirror", "row_mirror"):
        a(f"v_add_f32_dpp v{v}, v{v}, v{v} {ctl} row_mask:0xf bank_mask:0xf")
    a(f"v_add_f32_dpp v{v}, v{v}, v{v} row_bcast:15 row_mask:0xa bank_mask:0xf")
    a(f"v_add_f32_dpp v{v}, v{v}, v{v} row_bcast:31 row_mask:0xc bank_mask:0xf")
    a(f"v_readlane_b32 s{sdst}, v{v}, 63")

def k_ln(a, name, opt):
    kernel_begin(a, name)
    RS = 2112
    HOFF = 8 * RS
    a("s_cmp_ge_u32 s2, 256")
    a(f"s_cbranch_scc1 L_{name}_end")
    a(f"s_load_dwordx2 s[4:5], s[0:1], {KA['x']}")
    a(f"s_load_dwordx2 s[6:7], s[0:1], {KA['ws']}")
    a(f"s_load_dwordx2 s[32:33], s[0:1], {KA['wqkv']}")
    a(f"s_load_dwordx2 s[34:35], s[0:1], {KA['w1']}")
    a("v_and_b32 v1, 63, v0")
    a("v_lshrrev_b32 v2, 6, v0")
    a("v_readfirstlane_b32 s16, v2")
    a("v_lshlrev_b32 v3, 4, v1")
    a("s_lshl_b32 s17, s2, 3")
    a("s_add_u32 s17, s17, s16")
    a("s_lshl_b32 s18, s17, 11")
    a("s_waitcnt lgkmcnt(0)")
    srd(a, 8, 4, 5, 2048 * 1024 * 2)
    srd(a, 12, 6, 7, 8 << 20)
    a("buffer_load_dwordx4 v[4:7], v3, s[8:11], s18 offen")
    a("buffer_load_dwordx4 v[8:11], v3, s[8:11], s18 offen offset:1024")
    npf = 0
    fr = opt.get("ln_pf", 0)
    gran = opt.get("pf_gran", 64)
    if fr:
        a(f"v_lshlrev_b32 v48, {log2(gran)}, v1")
        n0 = len(a.ins)
        prefetch_linear(a, 34, 35, 0, 0, int(2048 * fr) * 7168, 17, 2048, 48, 49, 36, 40, gran)
        prefetch_linear(a, 32, 33, 0, 0, int(1024 * fr) * 6144, 17, 2048, 48, 49, 44, 41, gran)
        npf = sum(1 for x in a.ins[n0:] if x.op.startswith("buffer_load"))
    a("s_mov_b32 s20, 0xffff0000")
    a(f"s_mov_b32 s21, {f32(1.0/1024)}")
    a(f"s_mov_b32 s22, {f32(1e-5)}")
    a(f"s_mul_i32 s19, s16, {RS}")
    a("v_add_u32 v12, s19, v3")
    X = 16
    T = 32
    PK = 4
    a(f"s_waitcnt vmcnt({npf})")
    for rnd in range(2):
        for i in range(8):
            a(f"v_lshlrev_b32 v{X+2*i}, 16, v{PK+i}")
            a(f"v_and_b32 v{X+2*i+1}, s20, v{PK+i}")
        for i in range(4):
            a(f"v_pk_add_f32 v[{T+2*i}:{T+2*i+1}], v[{X+4*i}:{X+4*i+1}], v[{X+4*i+2}:{X+4*i+3}]")
        a(f"v_pk_add_f32 v[{T}:{T+1}], v[{T}:{T+1}], v[{T+2}:{T+3}]")
        a(f"v_pk_add_f32 v[{T+4}:{T+5}], v[{T+4}:{T+5}], v[{T+6}:{T+7}]")
        a(f"v_pk_add_f32 v[{T}:{T+1}], v[{T}:{T+1}], v[{T+4}:{T+5}]")
        a(f"v_add_f32 v{T}, v{T}, v{T+1}")
        wave_sum(a, T, T + 1, 24)
        a(f"v_mov_b32 v13, s24")
        a(f"v_mul_f32 v13, s21, v13")
        for i in range(16):
            a(f"v_sub_f32 v{T+i}, v{X+i}, v13")
        a(f"v_mul_f32 v14, v{T}, v{T}")
        a(f"v_mul_f32 v15, v{T+1}, v{T+1}")
        for i in range(2, 16, 2):
            a(f"v_fmac_f32 v14, v{T+i}, v{T+i}")
            a(f"v_fmac_f32 v15, v{T+i+1}, v{T+i+1}")
        a("v_add_f32 v14, v14, v15")
        wave_sum(a, 14, 15, 25)
        a("v_mov_b32 v14, s25")
        a("v_mul_f32 v14, s21, v14")
        a("v_cvt_pk_bf16_f32 v15, v13, v14")
        a("v_lshlrev_b32 v13, 16, v15")
        a("v_and_b32 v14, s20, v15")
        a("v_add_f32 v14, s22, v14")
        a("v_cvt_pk_bf16_f32 v14, v14, v14")
        a("v_and_b32 v14, s20, v14")
        a("v_sqrt_f32 v14, v14")
        a("v_cvt_pk_bf16_f32 v14, v14, v14")
        a("v_and_b32 v14, s20, v14")
        a("v_rcp_f32 v15, v14")
        a("v_fma_f32 v2, -v14, v15, 1.0")
        a("v_fma_f32 v15, v2, v15, v15")
        for i in range(16):
            a(f"v_sub_f32 v{T+i}, v{X+i}, v13")
        for i in range(8):
            a(f"v_cvt_pk_bf16_f32 v{PK+i}, v{T+2*i}, v{T+2*i+1}")
        for i in range(8):
            a(f"v_lshlrev_b32 v{T+2*i}, 16, v{PK+i}")
            a(f"v_and_b32 v{T+2*i+1}, s20, v{PK+i}")
        for i in range(16):
            a(f"v_mul_f32 v{T+i}, v{T+i}, v15")
        for i in range(8):
            a(f"v_cvt_pk_bf16_f32 v{PK+i}, v{T+2*i}, v{T+2*i+1}")
        off = 0 if rnd == 0 else HOFF
        a(f"ds_write_b128 v12, v[{PK}:{PK+3}] offset:{off}")
        a(f"ds_write_b128 v12, v[{PK+4}:{PK+7}] offset:{off+1024}")
        if rnd == 0:
            a("s_waitcnt lgkmcnt(0)")
    a("v_and_b32 v16, 7, v0")
    a("v_lshrrev_b32 v17, 3, v0")
    a(f"v_mul_u32_u24 v18, {RS}, v16")
    a("v_lshl_add_u32 v18, v17, 4, v18")
    a("v_lshrrev_b32 v19, 1, v17")
    a("v_lshlrev_b32 v19, 10, v19")
    a("v_and_b32 v20, 1, v17")
    a("v_lshl_add_u32 v19, v20, 9, v19")
    a("v_lshl_add_u32 v19, v16, 4, v19")
    a("s_lshr_b32 s26, s2, 2")
    a("s_lshl_b32 s26, s26, 16")
    a("s_and_b32 s27, s2, 3")
    a("s_lshl_b32 s27, s27, 7")
    a("s_add_u32 s26, s26, s27")
    a("s_add_u32 s27, s26, 32768")
    a("v_bfe_u32 v20, v1, 2, 2")
    a(f"v_mul_u32_u24 v20, {RS}, v20")
    a("v_lshrrev_b32 v21, 4, v1")
    a("v_lshl_add_u32 v20, v21, 5, v20")
    a("v_and_b32 v21, 3, v1")
    a("v_lshl_add_u32 v20, v21, 3, v20")
    a("s_lshl_b32 s28, s16, 8")
    a(f"s_add_u32 s28, s28, {HOFF}")
    a("v_add_u32 v20, s28, v20")
    a("v_lshrrev_b32 v21, 5, v1")
    a("v_lshlrev_b32 v21, 17, v21")
    a("v_and_b32 v22, 31, v1")
    a("v_lshl_add_u32 v21, v22, 4, v21")
    a("s_lshl_b32 s29, s16, 19")
    a("s_lshl_b32 s30, s2, 9")
    a("s_add_u32 s29, s29, s30")
    a(f"s_add_u32 s29, s29, {WS_HT}")
    a(f"s_add_u32 s30, s29, {2*131072}")
    a("s_waitcnt lgkmcnt(0)")
    a("s_barrier")
    a("ds_read_b128 v[24:27], v18")
    a("ds_read_b128 v[28:31], v18 offset:1024")
    a("ds_read_b64_tr_b16 v[32:33], v20")
    a(f"ds_read_b64_tr_b16 v[34:35], v20 offset:{4*RS}")
    a("ds_read_b64_tr_b16 v[36:37], v20 offset:128")
    a(f"ds_read_b64_tr_b16 v[38:39], v20 offset:{4*RS+128}")
    a("s_waitcnt lgkmcnt(5)")
    a("buffer_store_dwordx4 v[24:27], v19, s[12:15], s26 offen")
    a("s_waitcnt lgkmcnt(4)")
    a("buffer_store_dwordx4 v[28:31], v19, s[12:15], s27 offen")
    a("s_waitcnt lgkmcnt(2)")
    a("buffer_store_dwordx4 v[32:35], v21, s[12:15], s29 offen")
    a("s_waitcnt lgkmcnt(0)")
    a("buffer_store_dwordx4 v[36:39], v21, s[12:15], s30 offen")
    a(f"L_{name}_end:")
    a("s_endpgm")
    return dict(grid=256, block=512, lds=16 * RS)

def gemm_regs(frag=16):
    return dict(lane=1, vDP=2, vDW=[3, 4, 5, 6], vAPb=[7, 8], vAWb=[9, 10], vAP=[11, 12], vAW=[13, 14],
                vt=[16, 17, 18, 19], frag=frag,
                sP=4, sW=8, s_w=16, s_soffP=17, s_soffW=18, s_m0P=19, s_m0W=20, s_wslot=21, s_rslot=22, s_cnt=23,
                s_wp=24, s_ww=25, s_kg=26, st=[27, 3])

def pack_store_tile(a, c, tmp, vaddr, ssrd, soff, imm=0, mod=""):
    for j in range(8):
        a(f"v_cvt_pk_bf16_f32 v{tmp+j}, v{c+2*j}, v{c+2*j+1}")
    a(f"buffer_store_dwordx4 v[{tmp}:{tmp+3}], v{vaddr}, s[{ssrd}:{ssrd+3}], s{soff} offen offset:{imm}{mod}")
    a(f"buffer_store_dwordx4 v[{tmp+4}:{tmp+7}], v{vaddr}, s[{ssrd}:{ssrd+3}], s{soff} offen offset:{imm+1024}{mod}")

def p_srd(a, g, s_tile, rowbytes, base, nrec, s_extra=None, d=4, soff=17):
    per = g.KS // g.npd
    a(f"s_lshr_b32 s40, s16, {log2(per)}")
    a(f"s_mul_i32 s41, s{s_tile}, {g.TP//32}")
    a("s_add_u32 s40, s40, s41")
    a(f"s_mul_i32 s40, s40, {rowbytes}")
    if base: a(f"s_add_u32 s40, s40, {base}")
    if s_extra is not None: a(f"s_add_u32 s40, s40, s{s_extra}")
    srd_s(a, d, 28, 29, nrec, 40)
    a(f"s_and_b32 s{soff}, s16, {per-1}")
    a(f"s_mul_i32 s{soff}, s{soff}, {g.npd*1024}")

def gelu_tile(a, c, BF, T):
    for e in range(16):
        a(f"v_add_f32 v{c+e}, v{c+e}, v{BF+e}")
    for e in range(16):
        a(f"v_mul_f32 v{T+e}, v{c+e}, v{c+e}")
    for e in range(16):
        a(f"v_fma_f32 v{T+e}, v{T+e}, s43, v15")
    for e in range(16):
        a(f"v_mul_f32 v{T+e}, v{T+e}, v{c+e}")
    for e in range(16):
        a(f"v_exp_f32 v{T+e}, v{T+e}")
    for e in range(16):
        a(f"v_add_f32 v{T+e}, 1.0, v{T+e}")
    for e in range(16):
        a(f"v_rcp_f32 v{T+e}, v{T+e}")
    for e in range(16):
        a(f"v_mul_f32 v{c+e}, v{c+e}, v{T+e}")

def k_gemm1(a, name, opt):
    kernel_begin(a, name)
    abl = opt.get("abl", ())
    smod = opt.get("smod", "")
    gq = {o: G(256, 256, opt["q_bk"], opt["q_ns"], 2, 4, o, False, 3072 * 2, dma_first=opt.get("q_df"), rd_rate=opt.get("rate", 2), abl=abl) for o in ("WP", "PW")}
    gm = G(256, 128, opt["m_bk"], opt["m_ns"], opt["m_wp"], opt["m_ww"], "WP", False, 3584 * 2, KG=opt["m_kg"], dma_first=opt.get("m_df"), rd_rate=opt.get("rate", 2), abl=abl)
    R = gemm_regs(frag=16)
    ACC = 16 + 2 * gq["WP"].nfrag
    NWG = 256 if opt.get("g1_pf") else 208
    a("s_cmp_ge_u32 s2, 208")
    a(f"s_cbranch_scc1 L_{name}_{'pf' if opt.get('g1_pf') else 'end'}")
    stamp(a, 0)
    a(f"s_load_dwordx2 s[28:29], s[0:1], {KA['ws']}")
    a(f"s_load_dwordx2 s[30:31], s[0:1], {KA['wqkv']}")
    a(f"s_load_dwordx2 s[32:33], s[0:1], {KA['w1']}")
    a(f"s_load_dwordx2 s[34:35], s[0:1], {KA['b1']}")
    a("v_and_b32 v1, 63, v0")
    a("v_lshrrev_b32 v13, 6, v0")
    a("v_readfirstlane_b32 s16, v13")
    a("s_and_b32 s36, s2, 7")
    a("s_lshr_b32 s37, s2, 3")
    a("s_cmp_lt_u32 s37, 14")
    a(f"s_cbranch_scc1 L_{name}_{'end' if opt.get('only_qkv') else 'mlp'}")
    if opt.get("only_mlp"): a(f"s_branch L_{name}_end")
    g = gq["WP"]
    a("s_sub_u32 s37, s37, 14")
    a("s_and_b32 s38, s36, 1")
    a("s_lshl_b32 s38, s38, 2")
    a("s_and_b32 s39, s37, 3")
    a("s_add_u32 s38, s38, s39")
    a("s_lshr_b32 s39, s36, 1")
    a("s_mul_i32 s39, s39, 3")
    a("s_lshr_b32 s40, s37, 2")
    a("s_add_u32 s39, s39, s40")
    wave_coords(a, g, R)
    gemm_setup_dma(a, g, R)
    a("s_waitcnt lgkmcnt(0)")
    p_srd(a, g, 38, 65536, WS_XN, 65536)
    srd(a, 8, 30, 31, 1024 * 3072 * 2)
    a(f"s_mul_i32 s18, s16, {g.nwd*g.RP*g.ldw}")
    a("s_lshl_b32 s40, s39, 9")
    a("s_add_u32 s18, s18, s40")
    gemm_prologue_dma(a, g, R)
    gemm_setup_rd(a, g, R)
    for i in range(g.nP * g.nW * 16):
        a(f"v_mov_b32 v{ACC+i}, 0")
    srd(a, 12, 28, 29, 12 << 20, WS_QKV)
    acc = lambda i, j: ACC + (i * g.nW + j) * 16
    stamp(a, 1)
    a("s_cmp_ge_u32 s39, 8")
    a(f"s_cbranch_scc1 L_{name}_v")
    gemm_loop(a, gq["WP"], R, 1024 // g.BK, name + "_qk", acc)
    a(f"s_branch L_{name}_qepi")
    a(f"L_{name}_v:")
    gemm_loop(a, gq["PW"], R, 1024 // g.BK, name + "_vv", acc)
    a(f"L_{name}_qepi:")
    a("s_nop 15")
    stamp(a, 2)
    a("s_lshl_b32 s40, s39, 3")
    a(f"s_mul_i32 s41, s25, {g.nW}")
    a("s_add_u32 s40, s40, s41")
    a("s_lshl_b32 s40, s40, 6")
    a("s_lshl_b32 s41, s38, 3")
    a("s_add_u32 s40, s40, s41")
    a(f"s_mul_i32 s41, s24, {g.nP}")
    a("s_add_u32 s40, s40, s41")
    a("s_lshl_b32 s40, s40, 11")
    n = 0
    for j in range(g.nW):
        for i in range(g.nP):
            if i % 2 == 0:
                a(f"s_add_u32 s41, s40, {j*64*2048 + i*2048}")
            pack_store_tile(a, acc(i, j), 16 + 8 * (n % 4), R["vDP"], 12, 41, (i % 2) * 2048, smod)
            n += 1
    stamp(a, 3)
    if STAMPS: a("s_waitcnt vmcnt(0)")
    stamp(a, 4)
    stamp_flush(a, 5, 28, 29, 16, 1)
    a("s_endpgm")
    a(f"L_{name}_mlp:")
    g = gm
    ACCM = 16 + max(2 * g.nfrag, 32)
    a("s_cmp_ge_u32 s37, 7")
    a("s_cselect_b32 s38, 1, 0")
    a("s_mul_i32 s39, s38, 7")
    a("s_sub_u32 s39, s37, s39")
    a("s_and_b32 s40, s36, 1")
    a("s_lshl_b32 s40, s40, 1")
    a("s_add_u32 s38, s38, s40")
    a("s_lshr_b32 s40, s36, 1")
    a("s_mul_i32 s40, s40, 7")
    a("s_add_u32 s39, s39, s40")
    wave_coords(a, g, R)
    gemm_setup_dma(a, g, R)
    a("s_waitcnt lgkmcnt(0)")
    BIAS = ACCM + g.nP * g.nW * 16
    srd(a, 44, 34, 35, 3584 * 2)
    a("v_lshrrev_b32 v13, 5, v1")
    a("v_lshlrev_b32 v13, 3, v13")
    a("s_lshl_b32 s42, s39, 8")
    a(f"s_mul_i32 s41, s25, {g.nW*64}")
    a("s_add_u32 s41, s41, s42")
    for j in range(g.nW):
        for q in range(4):
            b = BIAS + j * 8 + q * 2
            a(f"buffer_load_dwordx2 v[{b}:{b+1}], v13, s[44:47], s41 offen offset:{j*64+q*16}")
    p_srd(a, g, 38, 131072, WS_HT, 131072)
    srd(a, 8, 32, 33, 2048 * 3584 * 2)
    a(f"s_mul_i32 s18, s16, {g.nwd*g.RP*g.ldw}")
    a("s_add_u32 s18, s18, s42")
    gemm_prologue_dma(a, g, R)
    gemm_setup_rd(a, g, R)
    for i in range(g.nP * g.nW * 16):
        a(f"v_mov_b32 v{ACCM+i}, 0")
    srd(a, 12, 28, 29, 8 << 20, WS_U)
    acc = lambda i, j: ACCM + (i * g.nW + j) * 16
    stamp(a, 1)
    gemm_loop(a, g, R, 2048 // g.BK, name + "_m1", acc)
    a("s_nop 15")
    stamp(a, 2)
    nPk = g.nP
    if g.KG == 2:
        kgroup_reduce(a, g, R, acc, 16)
        nPk = g.nP // 2
    c0 = -2.0 * 0.7978845608028654 * 1.4426950408889634
    a(f"s_mov_b32 s42, {f32(c0)}")
    a(f"s_mov_b32 s43, {f32(c0*0.044715)}")
    a("s_mov_b32 s48, 0xffff0000")
    a("s_lshl_b32 s40, s38, 3")
    a(f"s_mul_i32 s41, s24, {g.nP}")
    a("s_add_u32 s40, s40, s41")
    if g.KG == 2:
        a(f"s_mul_i32 s41, s26, {nPk}")
        a("s_add_u32 s40, s40, s41")
    a("s_mul_i32 s40, s40, 224")
    a("s_lshl_b32 s41, s39, 3")
    a("s_add_u32 s40, s40, s41")
    a(f"s_mul_i32 s41, s25, {g.nW*2}")
    a("s_add_u32 s40, s40, s41")
    a("s_lshl_b32 s40, s40, 10")
    BF = 16
    a("v_mov_b32 v15, s42")
    for j in range(g.nW):
        for q in range(8):
            src = BIAS + j * 8 + q
            a(f"v_lshlrev_b32 v{BF+2*q}, 16, v{src}")
            a(f"v_and_b32 v{BF+2*q+1}, s48, v{src}")
        for i in range(nPk):
            c = acc(i, j)
            gelu_tile(a, c, BF, 32)
            a(f"s_add_u32 s41, s40, {(i*224 + 2*j)*1024}")
            pack_store_tile(a, c, c, R["vDP"], 12, 41, 0, smod)
    stamp(a, 3)
    if STAMPS: a("s_waitcnt vmcnt(0)")
    stamp(a, 4)
    stamp_flush(a, 5, 28, 29, 16, 1)
    a(f"L_{name}_end:")
    a("s_endpgm")
    if opt.get("g1_pf"):
        gran = opt.get("pf_gran", 64)
        fr = opt.get("ln_pf", 0)
        a(f"L_{name}_pf:")
        a("s_cmp_ge_u32 s2, 256")
        a(f"s_cbranch_scc1 L_{name}_end")
        a(f"s_load_dwordx2 s[30:31], s[0:1], {KA['wqkv']}")
        a(f"s_load_dwordx2 s[32:33], s[0:1], {KA['w1']}")
        a(f"s_load_dwordx2 s[34:35], s[0:1], {KA['w2']}")
        a(f"s_load_dwordx2 s[36:37], s[0:1], {KA['wo']}")
        a("v_and_b32 v1, 63, v0")
        a("v_lshrrev_b32 v13, 6, v0")
        a("v_readfirstlane_b32 s16, v13")
        a(f"v_lshlrev_b32 v2, {log2(gran)}, v1")
        a("s_sub_u32 s17, s2, 208")
        a("s_lshl_b32 s17, s17, 3")
        a("s_add_u32 s17, s17, s16")
        a("s_waitcnt lgkmcnt(0)")
        if opt["g1_pf"] & 1:
            NCH = 4
            for c in range(NCH):
                f0 = fr + (1 - fr) * c / NCH; f1 = fr + (1 - fr) * (c + 1) / NCH
                prefetch_linear(a, 32, 33, 0, int(2048 * f0) * 7168, int(2048 * f1) * 7168, 17, 384, 2, 3, 4, 20, gran)
                prefetch_linear(a, 30, 31, 0, int(1024 * f0) * 6144, int(1024 * f1) * 6144, 17, 384, 2, 3, 8, 21, gran)
        if opt["g1_pf"] & 2:
            a("s_waitcnt vmcnt(0)")
            prefetch_linear(a, 34, 35, 0, 0, 3584 * 4096, 17, 384, 2, 3, 4, 20, gran)
            prefetch_linear(a, 36, 37, 0, 0, 1024 * 2048, 17, 384, 2, 3, 8, 21, gran)
        a("s_endpgm")
    return dict(grid=NWG, block=512, lds=max(gq["WP"].lds, gm.lds))

AS, AKF, AQ, AO = 0, 144, 216, 224
def attn_loads(a, swslo, swshi):
    a("v_lshlrev_b32 v240, 4, v242")
    srd(a, 44, swslo, swshi, 12 << 20, WS_QKV)
    srd(a, 48, swslo, swshi, 4 << 20, WS_O)
    a("s_lshl_b32 s54, s52, 17")
    a("s_lshl_b32 s55, s53, 11")
    a("s_add_u32 s55, s55, s54")
    a(f"buffer_load_dwordx4 v[{AQ}:{AQ+3}], v240, s[44:47], s55 offen")
    a(f"buffer_load_dwordx4 v[{AQ+4}:{AQ+7}], v240, s[44:47], s55 offen offset:1024")
    a("s_sub_u32 s56, s53, 8")
    a(f"s_add_u32 s57, s54, {32*131072}")
    for t in range(9):
        a(f"s_add_i32 s{90+t}, s56, {t}")
        a(f"s_max_i32 s{90+t}, s{90+t}, 0")
        a(f"s_lshl_b32 s{90+t}, s{90+t}, 11")
        a(f"s_add_u32 s{90+t}, s{90+t}, s57")
        k = AKF + 8 * t
        a(f"buffer_load_dwordx4 v[{k}:{k+3}], v240, s[44:47], s{90+t} offen")
        a(f"buffer_load_dwordx4 v[{k+4}:{k+7}], v240, s[44:47], s{90+t} offen offset:1024")
        a(f"s_add_u32 s{90+t}, s{90+t}, {32*131072}")

def attn_compute(a, name, nmid, smod=""):
    S, KF, Q, O = AS, AKF, AQ, AO
    a("v_and_b32 v243, 31, v242")
    a("v_lshrrev_b32 v244, 5, v242")
    a("v_lshlrev_b32 v244, 2, v244")
    a("v_sub_u32 v243, v243, v244")
    a(f"v_mov_b32 v245, {f32(-1e30)}")
    for j in range(16):
        kl = (j & 3) + 8 * (j >> 2)
        a(f"v_cmp_le_i32 vcc, {kl}, v243")
        a(f"v_cndmask_b32_e64 v{S+128+j}, v245, 0, vcc")
        a(f"v_cndmask_b32_e64 v{S+j}, 0, v245, vcc")
    for i in range(16):
        a(f"v_mov_b32 v{O+i}, 0")
    for t in range(9):
        k = KF + 8 * t; s = S + 16 * t
        a(f"s_waitcnt vmcnt({16 + nmid})")
        if t < 8:
            a(f"s_cmp_lt_i32 s56, {-t}")
            a(f"s_cbranch_scc1 L_{name}_neg{t}")
        c0 = f"v[{s}:{s+15}]" if t in (0, 8) else "0"
        a(f"v_mfma_f32_32x32x16_bf16 v[{s}:{s+15}], v[{k}:{k+3}], v[{Q}:{Q+3}], {c0}")
        a(f"v_mfma_f32_32x32x16_bf16 v[{s}:{s+15}], v[{k+4}:{k+7}], v[{Q+4}:{Q+7}], v[{s}:{s+15}]")
        if t < 8:
            a(f"s_branch L_{name}_done{t}")
            a(f"L_{name}_neg{t}:")
            for j in range(16):
                a(f"v_mov_b32 v{s+j}, v245")
            a(f"L_{name}_done{t}:")
        a(f"buffer_load_dwordx4 v[{k}:{k+3}], v240, s[44:47], s{90+t} offen")
        a(f"buffer_load_dwordx4 v[{k+4}:{k+7}], v240, s[44:47], s{90+t} offen offset:1024")
    a("s_nop 12")
    mx = [246, 247, 248, 249]
    for c in range(4):
        a(f"v_max3_f32 v{mx[c]}, v{S+c*36}, v{S+c*36+1}, v{S+c*36+2}")
    for e in range(3, 35, 2):
        for c in range(4):
            a(f"v_max3_f32 v{mx[c]}, v{mx[c]}, v{S+c*36+e}, v{S+c*36+e+1}")
    for c in range(4):
        a(f"v_max_f32 v{mx[c]}, v{mx[c]}, v{S+c*36+35}")
    a(f"v_max3_f32 v246, v246, v247, v248")
    a(f"v_max_f32 v246, v246, v249")
    a("v_mov_b32 v247, v246")
    a("v_permlane32_swap_b32 v246, v247")
    a("v_max_f32 v246, v246, v247")
    cs = 32 ** -0.5 * 1.4426950408889634
    a(f"s_mov_b32 s58, {f32(cs)}")
    a("v_mul_f32 v246, s58, v246")
    for r in (250, 251, 252, 253):
        a(f"v_mov_b32 v{r}, 0")
    for t in range(9):
        k = KF + 8 * t; s = S + 16 * t
        for j in range(16):
            a(f"v_fma_f32 v{s+j}, v{s+j}, s58, -v246")
        for j in range(16):
            a(f"v_exp_f32 v{s+j}, v{s+j}")
        for j in range(0, 16, 4):
            a(f"v_pk_add_f32 v[250:251], v[250:251], v[{s+j}:{s+j+1}]")
            a(f"v_pk_add_f32 v[252:253], v[252:253], v[{s+j+2}:{s+j+3}]")
        for j in range(8):
            a(f"v_cvt_pk_bf16_f32 v{s+j}, v{s+2*j}, v{s+2*j+1}")
        a(f"s_waitcnt vmcnt({2*(8-t)})")
        a(f"v_mfma_f32_32x32x16_bf16 v[{O}:{O+15}], v[{k}:{k+3}], v[{s}:{s+3}], v[{O}:{O+15}]")
        a(f"v_mfma_f32_32x32x16_bf16 v[{O}:{O+15}], v[{k+4}:{k+7}], v[{s+4}:{s+7}], v[{O}:{O+15}]")
    a("v_pk_add_f32 v[250:251], v[250:251], v[252:253]")
    a("v_add_f32 v250, v250, v251")
    a("v_mov_b32 v251, v250")
    a("v_permlane32_swap_b32 v250, v251")
    a("v_add_f32 v250, v250, v251")
    a("v_rcp_f32 v250, v250")
    a("s_lshl_b32 s54, s53, 6")
    a("s_lshl_b32 s55, s52, 1")
    a("s_add_u32 s54, s54, s55")
    a("s_lshl_b32 s54, s54, 10")
    for j in range(16):
        a(f"v_mul_f32 v{O+j}, v{O+j}, v250")
    pack_store_tile(a, O, O, 240, 48, 54, 0, smod)

def k_attn(a, name, opt):
    kernel_begin(a, name)
    a("s_cmp_ge_u32 s2, 256")
    a(f"s_cbranch_scc1 L_{name}_end")
    a(f"s_load_dwordx2 s[28:29], s[0:1], {KA['ws']}")
    a("v_and_b32 v242, 63, v0")
    a("v_lshrrev_b32 v13, 6, v0")
    a("v_readfirstlane_b32 s16, v13")
    a("s_and_b32 s36, s2, 7")
    a("s_lshr_b32 s37, s2, 3")
    a("s_lshl_b32 s52, s36, 2")
    a("s_lshr_b32 s53, s37, 3")
    a("s_add_u32 s52, s52, s53")
    a("s_and_b32 s53, s37, 7")
    a("s_lshl_b32 s53, s53, 3")
    a("s_add_u32 s53, s53, s16")
    a("s_waitcnt lgkmcnt(0)")
    attn_loads(a, 28, 29)
    attn_compute(a, name, 0)
    a(f"L_{name}_end:")
    a("s_endpgm")
    return dict(grid=256, block=512, lds=0)

def k_mid(a, name, opt):
    kernel_begin(a, name)
    abl = opt.get("abl", ())
    smod = opt.get("smod", "")
    kw = dict(dma_first=opt.get("m_df"), rd_rate=opt.get("rate", 2), abl=abl)
    g1 = G(256, 128, 64, 3, 4, 2, "PW", True, 2048 * 2, **kw)
    g2 = G(128, 256, 64, 3, 2, 4, "WP", True, 1024 * 2, **kw)
    R1 = gemm_regs(frag=32)
    R1["vt"] = [32, 33, 34, 35]
    R2 = dict(R1, vDW=[16, 17, 18, 19], vAPb=[20], vAWb=[21, 22], vAP=[23], vAW=[24, 25],
              sP=44, sW=48, s_soffP=52, s_soffW=53, s_m0P=54, s_m0W=55, s_wp=25, s_ww=24)
    ACC = 32 + 2 * g1.nfrag
    a("s_cmp_ge_u32 s2, 256")
    a(f"s_cbranch_scc1 L_{name}_end")
    stamp(a, 0)
    a(f"s_load_dwordx2 s[28:29], s[0:1], {KA['ws']}")
    a(f"s_load_dwordx2 s[30:31], s[0:1], {KA['w2']}")
    a(f"s_load_dwordx2 s[32:33], s[0:1], {KA['wo']}")
    a("v_and_b32 v1, 63, v0")
    a("v_lshrrev_b32 v13, 6, v0")
    a("v_readfirstlane_b32 s16, v13")
    a("s_and_b32 s36, s2, 7")
    a("s_lshr_b32 s37, s2, 3")
    a("s_lshr_b32 s38, s37, 3")
    a("s_and_b32 s39, s36, 1")
    a("s_lshl_b32 s39, s39, 3")
    a("s_and_b32 s40, s37, 7")
    a("s_add_u32 s39, s39, s40")
    a("s_lshr_b32 s42, s36, 1")
    wave_coords(a, g1, R1)
    gemm_setup_dma(a, g1, R1)
    a("s_waitcnt lgkmcnt(0)")
    a(f"s_mul_i32 s43, s42, {56*1024}")
    p_srd(a, g1, 38, 224 * 1024, WS_U, 56 * 1024, 43)
    srd(a, 8, 30, 31, 3584 * 4096)
    a(f"s_mul_i32 s18, s16, {g1.nwd*g1.RP*g1.ldw}")
    a("s_lshl_b32 s40, s39, 8")
    a("s_add_u32 s18, s18, s40")
    a(f"s_mul_i32 s40, s42, {896*4096}")
    a("s_add_u32 s18, s18, s40")
    acc1 = lambda i, j: ACC + (i * 2 + j) * 16
    acc2 = lambda i, j: ACC + (j * 2 + i) * 16
    S1 = Stream(g1, R1, acc1); S2 = Stream(g2, R2, acc2)
    prologue_dma(a, S1)
    gemm_setup_rd(a, g1, R1)
    gemm_setup_dma(a, g2, R2)
    gemm_setup_rd(a, g2, R2)
    a("s_lshl_b32 s43, s42, 14")
    p_srd(a, g2, 39, 64 * 1024, WS_O, 16 * 1024, 43, d=44, soff=52)
    srd(a, 48, 32, 33, 0)
    a("s_add_u32 s50, s42, 1")
    a(f"s_lshl_b32 s50, s50, 19")
    a(f"s_mul_i32 s53, s16, {g2.nwd*g2.RP*g2.ldw}")
    a("s_lshl_b32 s40, s38, 9")
    a("s_add_u32 s53, s53, s40")
    a("s_lshl_b32 s40, s42, 19")
    a("s_add_u32 s53, s53, s40")
    for i in range(64):
        a(f"v_mov_b32 v{ACC+i}, 0")
    srd(a, 12, 28, 29, 16 << 20, WS_PART)
    stamp(a, 1)
    gemm_chain(a, S1, 14, S2, 4, name + "_g")
    a("s_nop 15")
    stamp(a, 2)
    a("s_lshl_b32 s40, s38, 3")
    a("s_lshl_b32 s41, s24, 1")
    a("s_add_u32 s40, s40, s41")
    a("s_lshl_b32 s40, s40, 6")
    a("s_lshl_b32 s41, s39, 2")
    a("s_add_u32 s40, s40, s41")
    a("s_lshl_b32 s41, s25, 1")
    a("s_add_u32 s40, s40, s41")
    a("s_lshl_b32 s40, s40, 11")
    a("s_lshl_b32 s41, s42, 22")
    a("s_add_u32 s40, s40, s41")
    for i in range(2):
        a(f"s_add_u32 s41, s40, {i*64*2048}")
        for j in range(2):
            c = acc1(i, j)
            pack_store_tile(a, c, c, R1["vDP"], 12, 41, j * 2048, smod)
    stamp(a, 3)
    if STAMPS: a("s_waitcnt vmcnt(0)")
    stamp(a, 4)
    stamp_flush(a, 5, 28, 29, 16, 2)
    a(f"L_{name}_end:")
    a("s_endpgm")
    return dict(grid=256, block=512, lds=g1.lds)

def final_tile(a, c, XR, B2, VX, sout, soff, t0):
    for p in range(2):
        for e in range(4):
            a(f"v_permlane32_swap_b32 v{c+8*p+e}, v{c+8*p+4+e}")
    for p in range(2):
        r = XR + p * 4
        for e in range(4):
            a(f"v_lshlrev_b32 v{t0}, 16, v{r+e}")
            a(f"v_and_b32 v{t0+1}, s48, v{r+e}")
            a(f"v_add_f32 v{t0}, v{t0}, v{B2}")
            a(f"v_add_f32 v{t0+1}, v{t0+1}, v{B2}")
            a(f"v_add_f32 v{t0}, v{t0}, v{c+8*p+2*e}")
            a(f"v_add_f32 v{t0+1}, v{t0+1}, v{c+8*p+2*e+1}")
            a(f"v_cvt_pk_bf16_f32 v{r+e}, v{t0}, v{t0+1}")
        a(f"buffer_store_dwordx4 v[{r}:{r+3}], v{VX}, s[{sout}:{sout+3}], s{soff} offen offset:{p*32}")

def k_final(a, name, opt):
    kernel_begin(a, name)
    ACC = 8; XR = 24; PR = 32; B2 = 64; VX = 65
    a("s_cmp_ge_u32 s2, 256")
    a(f"s_cbranch_scc1 L_{name}_end")
    a(f"s_load_dwordx2 s[28:29], s[0:1], {KA['ws']}")
    a(f"s_load_dwordx2 s[34:35], s[0:1], {KA['b2']}")
    a(f"s_load_dwordx2 s[50:51], s[0:1], {KA['x']}")
    a(f"s_load_dwordx2 s[52:53], s[0:1], {KA['out']}")
    a("v_and_b32 v1, 63, v0")
    a("v_lshrrev_b32 v2, 6, v0")
    a("v_readfirstlane_b32 s16, v2")
    a("v_lshlrev_b32 v2, 4, v1")
    a("s_lshr_b32 s40, s2, 2")
    a("s_and_b32 s41, s2, 3")
    a("s_lshl_b32 s41, s41, 3")
    a("s_add_u32 s41, s41, s16")
    a(f"v_and_b32 v3, 31, v1")
    a(f"v_lshlrev_b32 v{VX}, 11, v3")
    a("v_lshrrev_b32 v4, 5, v1")
    a(f"v_lshl_add_u32 v{VX}, v4, 4, v{VX}")
    a("s_lshl_b32 s42, s40, 6")
    a("s_lshl_b32 s43, s41, 6")
    a("s_add_u32 s43, s43, s40")
    a("s_lshl_b32 s43, s43, 11")
    a("s_lshl_b32 s40, s40, 16")
    a("s_lshl_b32 s41, s41, 6")
    a("s_add_u32 s40, s40, s41")
    a("v_lshlrev_b32 v3, 1, v3")
    a("s_waitcnt lgkmcnt(0)")
    srd(a, 60, 28, 29, 16 << 20, WS_PART)
    for kq in range(4):
        r = PR + 8 * kq
        a(f"buffer_load_dwordx4 v[{r}:{r+3}], v2, s[60:63], s43 offen")
        a(f"buffer_load_dwordx4 v[{r+4}:{r+7}], v2, s[60:63], s43 offen offset:1024")
        if kq < 3: a(f"s_add_u32 s43, s43, {4<<20}")
    srd(a, 44, 50, 51, 2048 * 1024 * 2)
    srd(a, 56, 34, 35, 2048 * 2)
    srd(a, 12, 52, 53, 2048 * 1024 * 2)
    for p in range(2):
        r = XR + p * 4
        a(f"buffer_load_dwordx4 v[{r}:{r+3}], v{VX}, s[44:47], s40 offen offset:{p*32}")
    a(f"buffer_load_ushort v{B2}, v3, s[56:59], s42 offen")
    a("s_mov_b32 s48, 0xffff0000")
    c = ACC
    for kq in range(4):
        a(f"s_waitcnt vmcnt({3 + 2*(3-kq)})")
        for e in range(8):
            r = PR + 8 * kq + e
            if kq == 0:
                a(f"v_lshlrev_b32 v{c+2*e}, 16, v{r}")
                a(f"v_and_b32 v{c+2*e+1}, s48, v{r}")
            else:
                a(f"v_lshlrev_b32 v4, 16, v{r}")
                a(f"v_and_b32 v5, s48, v{r}")
                a(f"v_pk_add_f32 v[{c+2*e}:{c+2*e+1}], v[{c+2*e}:{c+2*e+1}], v[4:5]")
    a("s_waitcnt vmcnt(0)")
    a(f"v_lshlrev_b32 v{B2}, 16, v{B2}")
    final_tile(a, c, XR, B2, VX, 12, 40, 4)
    a(f"L_{name}_end:")
    a("s_endpgm")
    return dict(grid=256, block=512, lds=0)

DEFAULT = dict(q_bk=32, q_ns=4, m_bk=64, m_ns=3, m_wp=4, m_ww=2, m_kg=1, m_df=2, q_df=2, g1_pf=3, ln_pf=0.25, smod=" sc1")

def build(opt=None, only=None):
    o = dict(DEFAULT); o.update(opt or {})
    global STAMPS
    STAMPS = bool(o.get("stamps"))
    a = Asm()
    a('.amdgcn_target "amdgcn-amd-amdhsa--gfx950"')
    a(".text")
    ks = []
    for nm, fn in (("ln_kernel", lambda n: k_ln(a, n, o)), ("gemm1_kernel", lambda n: k_gemm1(a, n, o)),
                   ("attn_kernel", lambda n: k_attn(a, n, o)), ("mid_kernel", lambda n: k_mid(a, n, o)), ("final_kernel", lambda n: k_final(a, n, o))):
        st = len(a.ins)
        info = fn(nm)
        mv, ms, ma = a.maxreg(st)
        info.update(name=nm, v=mv + 1, s=ms + 1)
        ks.append(info)
    bad = a.verify()
    if bad:
        for b in bad[:20]: print("HAZARD", b, file=sys.stderr)
        raise SystemExit("hazards")
    head = open("cdna_kernels/%s.s.ref" % NAME).read().split("; Override launch")[0]
    out = head
    for k in ks:
        if only is None or k["name"] in only:
            out += f"; @launch kernel={k['name']} grid=({k['grid']},1,1) block=({k['block']},1,1) lds={k['lds']}\n"
    out += a.text()
    out += '.section .rodata,"a"\n'
    for k in ks:
        nv = (k["v"] + 7) // 8 * 8
        out += f""".p2align 6
.amdhsa_kernel {k['name']}
  .amdhsa_next_free_vgpr {nv}
  .amdhsa_next_free_sgpr {max(k['s'], 16)}
  .amdhsa_accum_offset {nv}
  .amdhsa_group_segment_fixed_size 0
  .amdhsa_kernarg_size 88
  .amdhsa_user_sgpr_count 2
  .amdhsa_user_sgpr_kernarg_segment_ptr 1
  .amdhsa_system_sgpr_workgroup_id_x 1
.end_amdhsa_kernel
"""
    return out, ks

if __name__ == "__main__":
    out, ks = build()
    path = sys.argv[1] if len(sys.argv) > 1 else "cdna_kernels/%s.s" % NAME
    open(path, "w").write(out)
    for k in ks: print(k)
```
